```python
import torch

def _softmax(x, axis=-1):
    return torch.softmax(x, dim=axis)

def _gelu(x):
    return torch.nn.functional.gelu(x, approximate='tanh')

def _silu(x):
    return torch.nn.functional.silu(x)

def _sigmoid(x):
    return torch.sigmoid(x)

def _layernorm(x, axis=-1, eps=1e-05):
    m = x.mean(dim=axis, keepdim=True)
    v = x.var(dim=axis, keepdim=True, unbiased=False)
    return (x - m) / torch.sqrt(v + eps)

def _scatter_add(tgt, idx, src, axis=0):
    return tgt.clone().index_add_(axis, idx, src)

def _segment_sum(src, seg, n):
    out = torch.zeros((n,) + src.shape[1:], dtype=src.dtype)
    return out.index_add_(0, seg, src)

def _pad(x, pw):
    flat = tuple((v for pair in reversed(pw) for v in pair))
    return torch.nn.functional.pad(x, flat)
kernel_name = 'gated_mix__memory_aug_recurrent_mem_tr__glu_gated_geglu__prompt'

def setup_inputs():

    _w = lambda a: (lambda t: t.to(torch.bfloat16) if t.is_floating_point() else t)(torch.as_tensor(a))

    def _A_setup():
        B, S, Dm = (1, 2048, 640)
        H, Dh = (32, 128)
        M, seg = (8, 32)
        seg = min(seg, S)
        S = S // seg * seg
        return {'x': _w((lambda *s: torch.randn(*s, dtype=torch.bfloat16) * 0.05)(B, S, Dm)), 'mem0': _w((lambda *s: torch.randn(*s, dtype=torch.bfloat16) * 0.4)(B, M, Dm)), 'Wq': _w((lambda *s: torch.randn(*s, dtype=torch.bfloat16) * 6.4)(Dm, H, Dh) * Dm ** (-0.5)), 'Wk': _w((lambda *s: torch.randn(*s, dtype=torch.bfloat16) * 6.4)(Dm, H, Dh) * Dm ** (-0.5)), 'Wv': _w((lambda *s: torch.randn(*s, dtype=torch.bfloat16) * 0.4)(Dm, H, Dh) * Dm ** (-0.5)), 'Wo': _w((lambda *s: torch.randn(*s, dtype=torch.bfloat16) * 0.4)(H, Dh, Dm) * (H * Dh) ** (-0.5)), 'seg_len': seg}
    _A_in = _A_setup()

    def _B_setup():
        B, S, Dm, Df = (1, 2048, 640, 1728)
        return {'x': _w((lambda *s: torch.randn(*s, dtype=torch.bfloat16) * 0.05)(B, S, Dm)), 'w_gate': _w((lambda *s: torch.randn(*s, dtype=torch.bfloat16) * 1.6)(Dm, Df) * Dm ** (-0.5)), 'w_up': _w((lambda *s: torch.randn(*s, dtype=torch.bfloat16) * 1.6)(Dm, Df) * Dm ** (-0.5)), 'w_down': _w((lambda *s: torch.randn(*s, dtype=torch.bfloat16) * 1.6)(Df, Dm) * Df ** (-0.5))}
    _B_in = _B_setup()
    return {'A_x': _A_in['x'], 'A_mem0': _A_in['mem0'], 'A_Wq': _A_in['Wq'], 'A_Wk': _A_in['Wk'], 'A_Wv': _A_in['Wv'], 'A_Wo': _A_in['Wo'], 'A_seg_len': _A_in['seg_len'], 'B_x': _B_in['x'], 'B_w_gate': _B_in['w_gate'], 'B_w_up': _B_in['w_up'], 'B_w_down': _B_in['w_down'], 'gate_w': _w((lambda *s: torch.randn(*s, dtype=torch.bfloat16) * 0.05)(640) * 16.0)}

def reference(A_x, A_mem0, A_Wq, A_Wk, A_Wv, A_Wo, A_seg_len, B_x, B_w_gate, B_w_up, B_w_down, gate_w):

    def _A_ref(x, mem0, Wq, Wk, Wv, Wo, seg_len):
        B, S, Dm = x.shape
        H, Dh = (Wq.shape[1], Wq.shape[2])
        M = mem0.shape[1]
        scale = Dh ** (-0.5)
        n_seg = S // seg_len
        L = M + seg_len
        idx = torch.arange(L)
        mask = (idx[:, None] < M) | (idx[:, None] >= idx[None, :])
        mem = mem0
        outs = []
        for s in range(n_seg):
            xs = x[:, s * seg_len:(s + 1) * seg_len, :].clone()
            h = torch.concatenate([mem, xs], axis=1)
            q = torch.einsum('btd,dhe->bhte', h, Wq)
            k = torch.einsum('btd,dhe->bhte', h, Wk)
            v = torch.einsum('btd,dhe->bhte', h, Wv)
            scores = torch.einsum('bhqe,bhke->bhqk', q, k) * scale
            scores = torch.where(mask[None, None], scores, -1000000000.0)
            p = _softmax(scores, axis=-1)
            o = torch.einsum('bhqk,bhke->bhqe', p, v)
            o = torch.einsum('bhte,hed->btd', o, Wo)
            mem = o[:, :M, :].clone()
            outs.append(o[:, M:, :])
        return torch.concatenate(outs, axis=1)

    def _B_ref(x, w_gate, w_up, w_down):
        g = torch.einsum('bsd,df->bsf', x, w_gate)
        u = torch.einsum('bsd,df->bsf', x, w_up)
        h = _gelu(g) * u
        return torch.einsum('bsf,fd->bsd', h, w_down)
    x = A_x
    g = _sigmoid((x * gate_w).sum(-1, keepdims=True))
    a = _A_ref(x, A_mem0, A_Wq, A_Wk, A_Wv, A_Wo, A_seg_len)
    b = _B_ref(x, B_w_gate, B_w_up, B_w_down)
    return g * a + (1 - g) * b
```

```python
from gen_common import *
import struct
def f32bits(x):
    return struct.unpack("<I", struct.pack("<f", x))[0]
SCALE_LOG2E = 128 ** -0.5 * 1.4426950408889634

def gen_attn(a, name):
    kernel_header(a, name)
    V = Alloc(1, 256)
    v_n = V.get("n"); v_g = V.get("g"); v_l = V.get("l")
    v_t = V.get("t"); v_t2 = V.get("t2"); v_t3 = V.get("t3"); v_t4 = V.get("t4")
    v_qo = V.get("qo"); v_mo = V.get("mo"); v_vo = V.get("vo"); v_vmo = V.get("vmo")
    v_q = V.get("q", 32, 4); v_k = V.get("k", 48, 4); v_v = V.get("v", 48, 4)
    v_s = V.get("s", 20, 4); v_p = V.get("p", 10, 2)
    v_o = v_q
    s_w, s_s, s_h = 3, 4, 5
    S_WS, S_B, S_B2 = 6, 8, 10
    s_t0, s_t1, s_c = 12, 13, 14
    S_MG2, S_D = 16, 18
    a("s_cmp_ge_u32 s2, 512")
    a(f"s_cbranch_scc1 {name}_end")
    a("s_load_dwordx2 s[6:7], s[0:1], 112")
    a(f"v_lshrrev_b32 v{v_t}, 6, v0")
    a(f"v_and_b32 v{v_l}, 63, v0")
    a(f"v_readfirstlane_b32 s{s_w}, v{v_t}")
    a(f"v_and_b32 v{v_n}, 15, v0")
    a(f"v_lshrrev_b32 v{v_g}, 4, v{v_l}")
    a(f"s_lshr_b32 s{s_s}, s2, 3")
    a(f"s_and_b32 s{s_h}, s2, 7")
    a(f"s_lshl_b32 s{s_h}, s{s_h}, 2")
    a(f"s_add_u32 s{s_h}, s{s_h}, s{s_w}")
    a(f"v_cmp_gt_u32 s[{S_MG2}:{S_MG2+1}], 2, v{v_g}")
    a(f"v_lshlrev_b32 v{v_t}, 2, v{v_g}")
    for r in range(4):
        a(f"v_add_u32 v{v_t2}, {r}, v{v_t}")
        a(f"v_cmp_le_u32 s[{S_D+2*r}:{S_D+2*r+1}], v{v_t2}, v{v_n}")
    a(f"v_lshlrev_b32 v{v_qo}, 13, v{v_n}")
    a(f"v_lshl_add_u32 v{v_qo}, v{v_g}, 4, v{v_qo}")
    a(f"v_and_b32 v{v_t}, 7, v{v_n}")
    a(f"v_lshlrev_b32 v{v_mo}, 13, v{v_t}")
    a(f"v_lshl_add_u32 v{v_mo}, v{v_g}, 4, v{v_mo}")
    a(f"v_lshlrev_b32 v{v_vo}, 12, v{v_n}")
    a(f"v_lshl_add_u32 v{v_vo}, v{v_g}, 3, v{v_vo}")
    a(f"v_and_b32 v{v_t}, 1, v{v_g}")
    a(f"v_lshlrev_b32 v{v_vmo}, 4, v{v_n}")
    a(f"v_lshl_add_u32 v{v_vmo}, v{v_t}, 3, v{v_vmo}")
    a(f"s_mov_b32 s{s_c}, {f32bits(SCALE_LOG2E)}")
    a("s_waitcnt lgkmcnt(0)")
    a(f"s_lshl_b32 s{s_t0}, s{s_s}, 18")
    a(f"s_lshl_b32 s{s_t1}, s{s_h}, 8")
    a(f"s_add_u32 s{s_t0}, s{s_t0}, s{s_t1}")
    a(f"s_add_u32 s{S_B}, s{S_WS}, s{s_t0}")
    a(f"s_addc_u32 s{S_B+1}, s{S_WS+1}, 0")
    a(f"s_add_u32 s{S_B2}, s{S_B}, {WS_K}")
    a(f"s_addc_u32 s{S_B2+1}, s{S_B+1}, 0")
    a(f"v_add_u32 v{v_t}, 0x20000, v{v_qo}")
    for qt in range(2):
        for ks in range(4):
            a(f"global_load_dwordx4 {vr(v_q + (qt*4+ks)*4, 4)}, v{v_qo if qt == 0 else v_t}, s[{S_B}:{S_B+1}] offset:{ks*64}")
    for t in (1, 2):
        for ks in range(4):
            a(f"global_load_dwordx4 {vr(v_k + (t*4+ks)*4, 4)}, v{v_qo if t == 1 else v_t}, s[{S_B2}:{S_B2+1}] offset:{ks*64}")
    a(f"s_lshl_b32 s{s_t0}, s{s_s}, 16")
    a(f"s_add_u32 s{s_t0}, s{s_t0}, s{s_t1}")
    a(f"s_add_u32 s{s_t0}, s{s_t0}, {WS_KMEM}")
    a(f"s_add_u32 s{S_B}, s{S_WS}, s{s_t0}")
    a(f"s_addc_u32 s{S_B+1}, s{S_WS+1}, 0")
    for ks in range(4):
        a(f"global_load_dwordx4 {vr(v_k + ks*4, 4)}, v{v_mo}, s[{S_B}:{S_B+1}] offset:{ks*64}")
    a(f"s_lshl_b32 s{s_t0}, s{s_h}, 19")
    a(f"s_lshl_b32 s{s_t1}, s{s_s}, 6")
    a(f"s_add_u32 s{s_t0}, s{s_t0}, s{s_t1}")
    a(f"s_add_u32 s{s_t0}, s{s_t0}, {WS_VT}")
    a(f"s_add_u32 s{S_B}, s{S_WS}, s{s_t0}")
    a(f"s_addc_u32 s{S_B+1}, s{S_WS+1}, 0")
    for dt in range(8):
        if dt: a(f"v_add_u32 v{v_t}, {dt*65536}, v{v_vo}")
        for t in (1, 2):
            a(f"global_load_dwordx2 {vr(v_v + (dt*3+t)*2, 2)}, v{v_vo if dt == 0 else v_t}, s[{S_B}:{S_B+1}] offset:{(t-1)*32}")
    a(f"s_lshl_b32 s{s_t0}, s{s_s}, 16")
    a(f"s_lshl_b32 s{s_t1}, s{s_h}, 11")
    a(f"s_add_u32 s{s_t0}, s{s_t0}, s{s_t1}")
    a(f"s_add_u32 s{s_t0}, s{s_t0}, {WS_VMEMT}")
    a(f"s_add_u32 s{S_B2}, s{S_WS}, s{s_t0}")
    a(f"s_addc_u32 s{S_B2+1}, s{S_WS+1}, 0")
    for dt in range(8):
        a(f"global_load_dwordx2 {vr(v_v + (dt*3)*2, 2)}, v{v_vmo}, s[{S_B2}:{S_B2+1}] offset:{dt*256}")
    a("s_waitcnt vmcnt(24)")
    tiles = [(0, 0), (1, 0), (0, 1), (1, 1), (2, 1)]
    for ks in range(4):
        for i, (t, qt) in enumerate(tiles):
            acc = vr(v_s + 4*i, 4)
            a(f"v_mfma_f32_16x16x32_bf16 {acc}, {vr(v_k + (t*4+ks)*4,4)}, {vr(v_q + (qt*4+ks)*4,4)}, {'0' if ks == 0 else acc}")
    a("s_nop 7")
    a("s_nop 1")
    a(f"v_mov_b32 v{v_t4}, 0xff800000")
    for i in (1, 4):
        for r in range(4):
            a(f"v_cndmask_b32 v{v_s+4*i+r}, v{v_t4}, v{v_s+4*i+r}, s[{S_D+2*r}:{S_D+2*r+1}]")
    for qt, idx in ((0, [0, 1]), (1, [2, 3, 4])):
        regs = [v_s + 4*i + r for i in idx for r in range(4)]
        m = v_t; m2 = v_t2
        a(f"v_max3_f32 v{m}, v{regs[0]}, v{regs[1]}, v{regs[2]}")
        a(f"v_max3_f32 v{m2}, v{regs[3]}, v{regs[4]}, v{regs[5]}")
        a(f"v_max3_f32 v{m}, v{regs[6]}, v{regs[7]}, v{m}")
        if len(regs) > 8:
            a(f"v_max3_f32 v{m2}, v{regs[8]}, v{regs[9]}, v{m2}")
            a(f"v_max3_f32 v{m}, v{regs[10]}, v{regs[11]}, v{m}")
        a(f"v_max_f32 v{m}, v{m}, v{m2}")
        for op in ("v_permlane16_swap_b32", "v_permlane32_swap_b32"):
            a(f"v_mov_b32 v{m2}, v{m}")
            a("s_nop 1")
            a(f"{op} v{m}, v{m2}")
            a(f"v_max_f32 v{m}, v{m}, v{m2}")
        a(f"v_mul_f32 v{m}, s{s_c}, v{m}")
        for r in regs:
            a(f"v_fma_f32 v{r}, v{r}, s{s_c}, -v{m}")
        for r in regs:
            a(f"v_exp_f32 v{r}, v{r}")
        a("s_nop 0")
        for r in regs[:4]:
            a(f"v_cndmask_b32 v{r}, 0, v{r}, s[{S_MG2}:{S_MG2+1}]")
        a(f"v_add_f32 v{m}, v{regs[0]}, v{regs[1]}")
        a(f"v_add_f32 v{m2}, v{regs[2]}, v{regs[3]}")
        for i in range(4, len(regs), 2):
            a(f"v_add_f32 v{m}, v{m}, v{regs[i]}")
            a(f"v_add_f32 v{m2}, v{m2}, v{regs[i+1]}")
        a(f"v_add_f32 v{m}, v{m}, v{m2}")
        for op in ("v_permlane16_swap_b32", "v_permlane32_swap_b32"):
            a(f"v_mov_b32 v{m2}, v{m}")
            a("s_nop 1")
            a(f"{op} v{m}, v{m2}")
            a(f"v_add_f32 v{m}, v{m}, v{m2}")
        a(f"v_rcp_f32 v{m}, v{m}")
        a("s_nop 0")
        for r in regs:
            a(f"v_mul_f32 v{r}, v{r}, v{m}")
    for i in range(5):
        a(f"v_cvt_pk_bf16_f32 v{v_p+2*i}, v{v_s+4*i}, v{v_s+4*i+1}")
        a(f"v_cvt_pk_bf16_f32 v{v_p+2*i+1}, v{v_s+4*i+2}, v{v_s+4*i+3}")
    a("s_waitcnt vmcnt(0)")
    a("s_nop 0")
    for i, (t, qt) in enumerate(tiles):
        for dt in range(8):
            acc = vr(v_o + (qt*8+dt)*4, 4)
            a(f"v_mfma_f32_16x16x16_bf16 {acc}, {vr(v_v + (dt*3+t)*2,2)}, {vr(v_p+2*i,2)}, {'0' if t == 0 else acc}")
    a(f"s_lshl_b32 s{s_t0}, s{s_s}, 18")
    a(f"s_lshl_b32 s{s_t1}, s{s_h}, 8")
    a(f"s_add_u32 s{s_t0}, s{s_t0}, s{s_t1}")
    a(f"s_add_u32 s{s_t0}, s{s_t0}, {WS_O}")
    a(f"s_add_u32 s{S_B}, s{S_WS}, s{s_t0}")
    a(f"s_addc_u32 s{S_B+1}, s{S_WS+1}, 0")
    a(f"v_lshlrev_b32 v{v_t}, 13, v{v_n}")
    a(f"v_lshl_add_u32 v{v_t}, v{v_g}, 3, v{v_t}")
    a(f"v_add_u32 v{v_t2}, 0x20000, v{v_t}")
    a("s_nop 7")
    for qt in range(2):
        for dt in range(8):
            ac = v_o + (qt*8+dt)*4
            a(f"v_cvt_pk_bf16_f32 v{ac}, v{ac}, v{ac+1}")
            a(f"v_cvt_pk_bf16_f32 v{ac+1}, v{ac+2}, v{ac+3}")
            a(f"global_store_dwordx2 v{v_t if qt == 0 else v_t2}, {vr(ac,2)}, s[{S_B}:{S_B+1}] offset:{dt*32}")
    a("s_waitcnt vmcnt(0)")
    a.label(f"{name}_end")
    a("s_endpgm")
    nv = (V.next + 7) // 8 * 8
    return kernel_desc(name, nv, 32, nv)
```

```python
MB = 1 << 20
WS_Q     = 0
WS_K     = 16 * MB
WS_VT    = 32 * MB
WS_H     = 48 * MB
WS_O     = 56 * MB
WS_KMEM  = 72 * MB
WS_VMEMT = 76 * MB
WS_MEMB  = 80 * MB
WS_PART  = 92 * MB
import os
RC = int(os.environ.get("RC", "8"))
RING = 4
MEMB_BYTES = 64 * RC * 10240
PART_BYTES = RING * 80 * 128 * 256

class Asm:
    def __init__(self):
        self.lines = []
        self.uid = 0
    def __call__(self, s):
        self.lines.append("    " + s)
    def label(self, l):
        self.lines.append(l + ":")
    def raw(self, s):
        self.lines.append(s)
    def newlabel(self, base):
        self.uid += 1
        return f"{base}_{self.uid}"
    def text(self):
        return "\n".join(self.lines) + "\n"

def vr(b, n=1):
    return f"v{b}" if n == 1 else f"v[{b}:{b+n-1}]"
def ar(b, n=1):
    return f"a{b}" if n == 1 else f"a[{b}:{b+n-1}]"
def sr(b, n=1):
    return f"s{b}" if n == 1 else f"s[{b}:{b+n-1}]"

class Alloc:
    def __init__(self, lo, hi):
        self.next = lo; self.hi = hi; self.names = {}
    def get(self, name, n=1, align=1):
        b = (self.next + align - 1) // align * align
        assert b + n <= self.hi, f"out of regs for {name}: need {b+n} > {self.hi}"
        self.next = b + n
        self.names[name] = b
        return b

def kernel_header(a, name):
    a.raw(f".globl {name}")
    a.raw(".p2align 8")
    a.raw(f".type {name},@function")
    a.label(name)

def kernel_desc(name, vgpr, sgpr, accum):
    return f""".amdhsa_kernel {name}
  .amdhsa_next_free_vgpr {vgpr}
  .amdhsa_next_free_sgpr {sgpr}
  .amdhsa_accum_offset {accum}
  .amdhsa_group_segment_fixed_size 0
  .amdhsa_kernarg_size 120
  .amdhsa_user_sgpr_count 2
  .amdhsa_user_sgpr_kernarg_segment_ptr 1
  .amdhsa_system_sgpr_workgroup_id_x 1
.end_amdhsa_kernel
"""
```

```python
from gen_common import *
import struct
def f32bits(x):
    return struct.unpack("<I", struct.pack("<f", x))[0]

G1_LDS = 4 * 32768
NJOBS1 = 123 * 16

def gen_gemm1(a, name, nwg=256, clear=True):
    kernel_header(a, name)
    V = Alloc(1, 256)
    v_n = V.get("n"); v_g = V.get("g"); v_l = V.get("l")
    v_aoff = V.get("aoff"); v_b0 = V.get("b0"); v_b1 = V.get("b1")
    v_ard = V.get("ard"); v_brd = V.get("brd"); v_ar = V.get("ar"); v_br = V.get("br")
    v_t = V.get("t"); v_t2 = V.get("t2"); v_t3 = V.get("t3"); v_t4 = V.get("t4")
    v_so = V.get("so")
    v_fa = V.get("fa", 32, 4)
    v_fb = V.get("fb", 32, 4)
    v_acc = V.get("acc", 64, 4)
    v_e = V.get("e", 16, 4)
    s_w, s_wm, s_wn = 3, 4, 5
    S_X, S_WQ, S_WK, S_WV, S_WG, S_WU, S_WS = 6, 8, 10, 12, 14, 16, 18
    SRD_A, SRD_B, SRD_U = 20, 24, 28
    s_jobl, s_kl, s_slotl, s_typel = 32, 33, 34, 35
    s_jobc, s_kc, s_slotc, s_typec = 36, 37, 38, 39
    s_aso, s_bso, s_rs, s_t0, s_t1, s_t2 = 40, 41, 42, 43, 44, 45
    S_MG, S_MU = 46, 48
    S_OB = 50
    s_ldone = 52
    s_c1, s_c2 = 53, 54
    a(f"s_cmp_ge_u32 s2, {nwg}")
    a(f"s_cbranch_scc1 {name}_end")
    a("s_load_dwordx2 s[6:7], s[0:1], 0")
    a("s_load_dwordx4 s[8:11], s[0:1], 16")
    a("s_load_dwordx2 s[12:13], s[0:1], 32")
    a("s_load_dwordx2 s[14:15], s[0:1], 64")
    a("s_load_dwordx2 s[16:17], s[0:1], 72")
    a("s_load_dwordx2 s[18:19], s[0:1], 112")
    a(f"v_lshrrev_b32 v{v_t}, 6, v0")
    a(f"v_and_b32 v{v_l}, 63, v0")
    a(f"v_readfirstlane_b32 s{s_w}, v{v_t}")
    a(f"v_and_b32 v{v_n}, 15, v0")
    a(f"v_lshrrev_b32 v{v_g}, 4, v{v_l}")
    a(f"s_lshr_b32 s{s_wm}, s{s_w}, 1")
    a(f"s_and_b32 s{s_wn}, s{s_w}, 1")
    a("s_waitcnt lgkmcnt(0)")
    if clear:
        total = MEMB_BYTES + PART_BYTES
        assert WS_PART == WS_MEMB + 8 * MB
        for (base, nbytes) in ((WS_MEMB, MEMB_BYTES), (WS_PART, PART_BYTES)):
            per = nbytes // (nwg * 4096)
            assert per * nwg * 4096 == nbytes
            a(f"s_mul_i32 s{s_t0}, s2, {per*4096}")
            a(f"s_add_u32 s{s_t0}, s{s_t0}, {base}")
            a(f"s_add_u32 s{S_OB}, s{S_WS}, s{s_t0}")
            a(f"s_addc_u32 s{S_OB+1}, s{S_WS+1}, 0")
            a(f"v_lshlrev_b32 v{v_t}, 4, v0")
            for i in range(4):
                a(f"v_mov_b32 v{v_e+i}, -1")
            for i in range(per):
                a(f"global_store_dwordx4 v{v_t}, {vr(v_e,4)}, s[{S_OB}:{S_OB+1}]")
                a(f"v_add_u32 v{v_t}, 4096, v{v_t}")
    a(f"s_mov_b32 s{SRD_A}, s{S_X}")
    a(f"s_and_b32 s{SRD_A+1}, s{S_X+1}, 0xffff")
    a(f"s_mov_b32 s{SRD_A+2}, {2048*1280}")
    a(f"s_mov_b32 s{SRD_A+3}, 0x00020000")
    a(f"s_mov_b32 s{SRD_B+3}, 0x00020000")
    a(f"s_mov_b32 s{SRD_U}, s{S_WU}")
    a(f"s_and_b32 s{SRD_U+1}, s{S_WU+1}, 0xffff")
    a(f"s_mov_b32 s{SRD_U+2}, {640*3456}")
    a(f"s_mov_b32 s{SRD_U+3}, 0x00020000")
    a(f"v_lshrrev_b32 v{v_t}, 3, v{v_l}")
    a(f"v_and_b32 v{v_t2}, 7, v{v_l}")
    a(f"v_xor_b32 v{v_t2}, v{v_t2}, v{v_t}")
    a(f"v_mul_u32_u24 v{v_aoff}, 1280, v{v_t}")
    a(f"v_lshl_add_u32 v{v_aoff}, v{v_t2}, 4, v{v_aoff}")
    a(f"v_and_b32 v{v_t}, 7, v{v_n}")
    a(f"v_xor_b32 v{v_t}, v{v_t}, v{v_g}")
    a(f"v_lshlrev_b32 v{v_t}, 4, v{v_t}")
    a(f"v_lshl_add_u32 v{v_ard}, v{v_n}, 7, v{v_t}")
    a(f"s_lshl_b32 s{s_t0}, s{s_wm}, 13")
    a(f"v_add_u32 v{v_ard}, s{s_t0}, v{v_ard}")
    a(f"v_lshrrev_b32 v{v_t}, 2, v{v_n}")
    a(f"v_and_b32 v{v_t2}, 1, v{v_g}")
    a(f"v_lshl_add_u32 v{v_t2}, v{v_t2}, 2, v{v_t}")
    a(f"v_lshl_add_u32 v{v_t}, v{v_g}, 3, v{v_t}")
    a(f"v_lshlrev_b32 v{v_t}, 8, v{v_t}")
    a(f"v_and_b32 v{v_t3}, 3, v{v_l}")
    a(f"v_lshl_add_u32 v{v_t}, v{v_t3}, 3, v{v_t}")
    a(f"s_lshl_b32 s{s_t0}, s{s_wn}, 2")
    a(f"v_xor_b32 v{v_t2}, s{s_t0}, v{v_t2}")
    a(f"v_lshl_add_u32 v{v_brd}, v{v_t2}, 5, v{v_t}")
    a(f"v_add_u32 v{v_brd}, 16384, v{v_brd}")
    a(f"v_lshrrev_b32 v{v_t}, 1, v{v_l}")
    a(f"v_xor_b32 v{v_t}, v{v_t}, v{v_g}")
    a(f"v_and_b32 v{v_t}, 1, v{v_t}")
    a(f"v_cmp_eq_u32 s[{S_MG}:{S_MG+1}], 0, v{v_t}")
    a(f"v_cmp_eq_u32 s[{S_MU}:{S_MU+1}], 1, v{v_t}")
    a(f"s_mov_b32 s{s_jobl}, s2")
    a(f"s_mov_b32 s{s_jobc}, s2")
    a(f"s_mov_b32 s{s_kl}, 0")
    a(f"s_mov_b32 s{s_kc}, 0")
    a(f"s_mov_b32 s{s_slotl}, 0")
    a(f"s_mov_b32 s{s_slotc}, 0")
    a(f"s_mov_b32 s{s_ldone}, 0")
    a(f"s_mov_b32 s{s_c1}, {f32bits(-2*0.7978845608028654*1.4426950408889634)}")
    a(f"s_mov_b32 s{s_c2}, {f32bits(0.044715)}")

    def type_of(sj, st):
        a(f"s_lshr_b32 s{st}, s{sj}, 9")

    def load_stage():
        skip = a.newlabel(f"{name}_ls_skip"); nodec = a.newlabel(f"{name}_ls_nodec")
        gu = a.newlabel(f"{name}_ls_gu"); dec_done = a.newlabel(f"{name}_ls_dd")
        bgu = a.newlabel(f"{name}_ls_bgu"); bdone = a.newlabel(f"{name}_ls_bd"); nowrap = a.newlabel(f"{name}_ls_nw")
        a(f"s_cmp_lg_u32 s{s_ldone}, 0")
        a(f"s_cbranch_scc1 {skip}")
        a(f"s_cmp_lg_u32 s{s_kl}, 0")
        a(f"s_cbranch_scc1 {nodec}")
        type_of(s_jobl, s_typel)
        a(f"s_and_b32 s{s_t0}, s{s_jobl}, 15")
        a(f"s_mul_i32 s{s_aso}, s{s_t0}, {128*1280}")
        a(f"s_mul_i32 s{s_t1}, s{s_w}, {32*1280}")
        a(f"s_add_u32 s{s_aso}, s{s_aso}, s{s_t1}")
        a(f"v_lshlrev_b32 v{v_t}, 1, v{v_g}")
        a(f"v_xor_b32 v{v_t}, v{v_t}, v{v_n}")
        a(f"s_lshr_b32 s{s_t1}, s{s_jobl}, 4")
        a(f"s_cmp_eq_u32 s{s_typel}, 3")
        a(f"s_cbranch_scc1 {gu}")
        a(f"s_cmp_eq_u32 s{s_typel}, 1")
        a(f"s_cselect_b32 s{SRD_B}, s{S_WK}, s{S_WQ}")
        a(f"s_cselect_b32 s{SRD_B+1}, s{S_WK+1}, s{S_WQ+1}")
        a(f"s_cmp_eq_u32 s{s_typel}, 2")
        a(f"s_cselect_b32 s{SRD_B}, s{S_WV}, s{SRD_B}")
        a(f"s_cselect_b32 s{SRD_B+1}, s{S_WV+1}, s{SRD_B+1}")
        a(f"s_and_b32 s{SRD_B+1}, s{SRD_B+1}, 0xffff")
        a(f"s_mov_b32 s{SRD_B+2}, {640*8192}")
        a(f"s_mov_b32 s{s_rs}, 8192")
        a(f"s_and_b32 s{s_t1}, s{s_t1}, 31")
        a(f"s_lshl_b32 s{s_t1}, s{s_t1}, 8")
        a(f"v_lshlrev_b32 v{v_b0}, 13, v{v_g}")
        a(f"v_lshl_add_u32 v{v_b0}, v{v_t}, 4, v{v_b0}")
        a(f"v_add_u32 v{v_b0}, s{s_t1}, v{v_b0}")
        a(f"v_xor_b32 v{v_b1}, 128, v{v_b0}")
        a(f"s_branch {dec_done}")
        a.label(gu)
        a(f"s_mov_b32 s{SRD_B}, s{S_WG}")
        a(f"s_and_b32 s{SRD_B+1}, s{S_WG+1}, 0xffff")
        a(f"s_mov_b32 s{SRD_B+2}, {640*3456}")
        a(f"s_mov_b32 s{s_rs}, 3456")
        a(f"s_sub_u32 s{s_t1}, s{s_t1}, 96")
        a(f"s_lshl_b32 s{s_t1}, s{s_t1}, 7")
        a(f"v_lshrrev_b32 v{v_t2}, 2, v{v_t}")
        a(f"v_and_b32 v{v_t}, 1, v{v_t}")
        a(f"v_lshlrev_b32 v{v_t}, 4, v{v_t}")
        a(f"v_lshl_add_u32 v{v_t}, v{v_t2}, 5, v{v_t}")
        a(f"v_xor_b32 v{v_t2}, 64, v{v_t}")
        a(f"v_mul_u32_u24 v{v_b0}, 3456, v{v_g}")
        a(f"v_add_u32 v{v_b0}, s{s_t1}, v{v_b0}")
        a(f"v_add_u32 v{v_b1}, v{v_b0}, v{v_t2}")
        a(f"v_add_u32 v{v_b0}, v{v_b0}, v{v_t}")
        a.label(dec_done)
        a(f"s_lshl_b32 s{s_t0}, s{s_w}, 4")
        a(f"s_mul_i32 s{s_bso}, s{s_t0}, s{s_rs}")
        a.label(nodec)
        a(f"s_lshl_b32 s{s_t0}, s{s_w}, 12")
        a(f"s_add_u32 s{s_t0}, s{s_t0}, s{s_slotl}")
        a(f"s_mov_b32 s{s_t1}, s{s_aso}")
        for i in range(4):
            a(f"s_add_u32 m0, s{s_t0}, {i*1024}")
            if i: a(f"s_add_u32 s{s_t1}, s{s_aso}, {i*8*1280}")
            else: a("s_nop 0")
            a(f"buffer_load_dwordx4 v{v_aoff}, s[{SRD_A}:{SRD_A+3}], s{s_t1} offen lds")
        a(f"s_add_u32 s{s_aso}, s{s_aso}, 128")
        a(f"s_add_u32 s{s_t0}, s{s_t0}, 16384")
        a(f"s_lshl_b32 s{s_t2}, s{s_rs}, 2")
        a(f"s_mov_b32 s{s_t1}, s{s_bso}")
        a(f"s_cmp_eq_u32 s{s_typel}, 3")
        a(f"s_cbranch_scc1 {bgu}")
        for i in range(4):
            a(f"s_add_u32 m0, s{s_t0}, {i*1024}")
            if i: a(f"s_add_u32 s{s_t1}, s{s_t1}, s{s_t2}")
            else: a("s_nop 0")
            a(f"buffer_load_dwordx4 v{v_b0 if i < 2 else v_b1}, s[{SRD_B}:{SRD_B+3}], s{s_t1} offen lds")
        a(f"s_branch {bdone}")
        a.label(bgu)
        for i in range(4):
            a(f"s_add_u32 m0, s{s_t0}, {i*1024}")
            if i: a(f"s_add_u32 s{s_t1}, s{s_t1}, s{s_t2}")
            a(f"s_mov_b64 exec, s[{S_MG}:{S_MG+1}]")
            a(f"buffer_load_dwordx4 v{v_b0 if i < 2 else v_b1}, s[{SRD_B}:{SRD_B+3}], s{s_t1} offen lds")
            a(f"s_mov_b64 exec, s[{S_MU}:{S_MU+1}]")
            a(f"buffer_load_dwordx4 v{v_b0 if i < 2 else v_b1}, s[{SRD_U}:{SRD_U+3}], s{s_t1} offen lds")
        a("s_mov_b64 exec, -1")
        a.label(bdone)
        a(f"s_lshl_b32 s{s_t2}, s{s_rs}, 6")
        a(f"s_add_u32 s{s_bso}, s{s_bso}, s{s_t2}")
        a(f"s_add_u32 s{s_slotl}, s{s_slotl}, 32768")
        a(f"s_and_b32 s{s_slotl}, s{s_slotl}, {4*32768-1}")
        a(f"s_add_u32 s{s_kl}, s{s_kl}, 1")
        a(f"s_cmp_lt_u32 s{s_kl}, 10")
        a(f"s_cbranch_scc1 {skip}")
        a(f"s_mov_b32 s{s_kl}, 0")
        a(f"s_add_u32 s{s_jobl}, s{s_jobl}, {nwg}")
        a(f"s_cmp_ge_u32 s{s_jobl}, {NJOBS1}")
        a(f"s_cselect_b32 s{s_ldone}, 1, 0")
        a.label(skip)

    def read_frags(st, ks):
        for b in range(4):
            areg = v_ar if ks == 0 else v_t4
            a(f"ds_read_b128 {vr(v_fa + st*16 + 4*b, 4)}, v{areg} offset:{b*2048}")
        for t in range(4):
            a(f"ds_read_b64_tr_b16 {vr(v_fb + st*16 + 4*t, 2)}, v{v_e + 8 + t} offset:{ks*8192}")
            a(f"ds_read_b64_tr_b16 {vr(v_fb + st*16 + 4*t + 2, 2)}, v{v_e + 8 + t} offset:{ks*8192 + 1024}")

    def set_addr():
        a(f"v_add_u32 v{v_ar}, s{s_slotc}, v{v_ard}")
        a(f"v_xor_b32 v{v_t4}, 64, v{v_ar}")
        a(f"v_add_u32 v{v_br}, s{s_slotc}, v{v_brd}")
        for t in range(4):
            a(f"v_xor_b32 v{v_e + 8 + t}, {t*32}, v{v_br}")

    def mfmas(st, first, orient):
        k = 0
        for b in range(4):
            for t in range(4):
                acc = vr(v_acc + (t*4 + b)*4, 4)
                A = vr(v_fa + st*16 + 4*b, 4); Bf = vr(v_fb + st*16 + 4*t, 4)
                c = "0" if first else acc
                if orient == 0:
                    a(f"v_mfma_f32_16x16x32_bf16 {acc}, {Bf}, {A}, {c}")
                else:
                    a(f"v_mfma_f32_16x16x32_bf16 {acc}, {A}, {Bf}, {c}")

    for i in range(4):
        load_stage()
    type_of(s_jobc, s_typec)
    a("s_waitcnt vmcnt(24)")
    a("s_barrier")
    set_addr()
    read_frags(0, 0)
    a.label(f"{name}_loop")
    read_frags(1, 1)
    a("s_waitcnt lgkmcnt(12)")
    for orient in (0, 1):
        pass
    def variant(st, firstflag):
        l1 = a.newlabel(f"{name}_v1"); l2 = a.newlabel(f"{name}_v2"); l3 = a.newlabel(f"{name}_v3"); le = a.newlabel(f"{name}_ve")
        if firstflag:
            a(f"s_cmp_eq_u32 s{s_kc}, 0")
            a(f"s_cbranch_scc1 {l2}")
        a(f"s_cmp_eq_u32 s{s_typec}, 2")
        a(f"s_cbranch_scc1 {l1}")
        mfmas(st, False, 0)
        a(f"s_branch {le}")
        a.label(l1)
        mfmas(st, False, 1)
        if firstflag:
            a(f"s_branch {le}")
            a.label(l2)
            a(f"s_cmp_eq_u32 s{s_typec}, 2")
            a(f"s_cbranch_scc1 {l3}")
            mfmas(st, True, 0)
            a(f"s_branch {le}")
            a.label(l3)
            mfmas(st, True, 1)
        a.label(le)
    variant(0, True)
    lw = a.newlabel(f"{name}_w0"); lw2 = a.newlabel(f"{name}_w1")
    a(f"s_cmp_lg_u32 s{s_ldone}, 0")
    a(f"s_cbranch_scc1 {lw}")
    a("s_waitcnt vmcnt(16) lgkmcnt(0)")
    a(f"s_branch {lw2}")
    a.label(lw)
    a("s_waitcnt vmcnt(0) lgkmcnt(0)")
    a.label(lw2)
    a("s_barrier")
    load_stage()
    a(f"s_add_u32 s{s_slotc}, s{s_slotc}, 32768")
    a(f"s_and_b32 s{s_slotc}, s{s_slotc}, {4*32768-1}")
    set_addr()
    read_frags(0, 0)
    variant(1, False)
    a(f"s_add_u32 s{s_kc}, s{s_kc}, 1")
    a(f"s_cmp_lt_u32 s{s_kc}, 10")
    a(f"s_cbranch_scc1 {name}_loop")
    a("s_nop 7")
    a("s_nop 1")
    a(f"s_and_b32 s{s_t0}, s{s_jobc}, 15")
    a(f"s_lshr_b32 s{s_t1}, s{s_jobc}, 4")
    a(f"s_cmp_eq_u32 s{s_typec}, 2")
    a(f"s_cbranch_scc1 {name}_epv")
    a(f"s_cmp_eq_u32 s{s_typec}, 3")
    a(f"s_cbranch_scc1 {name}_epgu")
    a(f"s_lshl_b32 s{s_t2}, s{s_typec}, 24")
    a(f"s_lshl_b32 s{s_t0}, s{s_t0}, 1")
    a(f"s_add_u32 s{s_t0}, s{s_t0}, s{s_wm}")
    a(f"s_lshl_b32 s{s_t0}, s{s_t0}, 19")
    a(f"s_add_u32 s{s_t2}, s{s_t2}, s{s_t0}")
    a(f"s_and_b32 s{s_t1}, s{s_t1}, 31")
    a(f"s_lshl_b32 s{s_t1}, s{s_t1}, 1")
    a(f"s_add_u32 s{s_t1}, s{s_t1}, s{s_wn}")
    a(f"s_lshl_b32 s{s_t1}, s{s_t1}, 7")
    a(f"s_add_u32 s{s_t2}, s{s_t2}, s{s_t1}")
    a(f"s_add_u32 s{S_OB}, s{S_WS}, s{s_t2}")
    a(f"s_addc_u32 s{S_OB+1}, s{S_WS+1}, 0")
    a(f"v_lshlrev_b32 v{v_so}, 13, v{v_n}")
    a(f"v_lshl_add_u32 v{v_so}, v{v_g}, 3, v{v_so}")
    for b in range(4):
        for t in range(4):
            ac = v_acc + (t*4 + b)*4
            e = v_e + (t % 2) * 2
            a(f"v_cvt_pk_bf16_f32 v{e}, v{ac}, v{ac+1}")
            a(f"v_cvt_pk_bf16_f32 v{e+1}, v{ac+2}, v{ac+3}")
            a(f"global_store_dwordx2 v{v_so}, {vr(e,2)}, s[{S_OB}:{S_OB+1}] offset:{t*32}")
        if b < 3: a(f"v_add_u32 v{v_so}, 0x20000, v{v_so}")
    a(f"s_branch {name}_epd")
    a.label(f"{name}_epv")
    a(f"s_and_b32 s{s_t1}, s{s_t1}, 31")
    a(f"s_lshl_b32 s{s_t1}, s{s_t1}, 1")
    a(f"s_add_u32 s{s_t1}, s{s_t1}, s{s_wn}")
    a(f"s_lshl_b32 s{s_t1}, s{s_t1}, 18")
    a(f"s_lshl_b32 s{s_t0}, s{s_t0}, 1")
    a(f"s_add_u32 s{s_t0}, s{s_t0}, s{s_wm}")
    a(f"s_lshl_b32 s{s_t0}, s{s_t0}, 7")
    a(f"s_add_u32 s{s_t2}, s{s_t1}, s{s_t0}")
    a(f"s_add_u32 s{s_t2}, s{s_t2}, {WS_VT}")
    a(f"s_add_u32 s{S_OB}, s{S_WS}, s{s_t2}")
    a(f"s_addc_u32 s{S_OB+1}, s{S_WS+1}, 0")
    a(f"v_lshlrev_b32 v{v_so}, 12, v{v_n}")
    a(f"v_lshl_add_u32 v{v_so}, v{v_g}, 3, v{v_so}")
    for t in range(4):
        for b in range(4):
            ac = v_acc + (t*4 + b)*4
            e = v_e + (b % 2) * 2
            a(f"v_cvt_pk_bf16_f32 v{e}, v{ac}, v{ac+1}")
            a(f"v_cvt_pk_bf16_f32 v{e+1}, v{ac+2}, v{ac+3}")
            a(f"global_store_dwordx2 v{v_so}, {vr(e,2)}, s[{S_OB}:{S_OB+1}] offset:{b*32}")
        if t < 3: a(f"v_add_u32 v{v_so}, 0x10000, v{v_so}")
    a(f"s_branch {name}_epd")
    a.label(f"{name}_epgu")
    a(f"s_lshl_b32 s{s_t0}, s{s_t0}, 1")
    a(f"s_add_u32 s{s_t0}, s{s_t0}, s{s_wm}")
    a(f"s_mul_i32 s{s_t0}, s{s_t0}, {64*3456}")
    a(f"s_sub_u32 s{s_t1}, s{s_t1}, 96")
    a(f"s_lshl_b32 s{s_t1}, s{s_t1}, 1")
    a(f"s_add_u32 s{s_t1}, s{s_t1}, s{s_wn}")
    a(f"s_lshl_b32 s{s_t1}, s{s_t1}, 6")
    a(f"s_add_u32 s{s_t2}, s{s_t1}, s{s_t0}")
    a(f"s_add_u32 s{s_t2}, s{s_t2}, {WS_H}")
    a(f"s_add_u32 s{S_OB}, s{S_WS}, s{s_t2}")
    a(f"s_addc_u32 s{S_OB+1}, s{S_WS+1}, 0")
    a(f"v_mul_u32_u24 v{v_so}, 3456, v{v_n}")
    a(f"v_lshl_add_u32 v{v_so}, v{v_g}, 3, v{v_so}")
    E = v_e
    for b in range(4):
        for p in range(2):
            ag = v_acc + ((2*p)*4 + b)*4
            au = v_acc + ((2*p+1)*4 + b)*4
            a(f"v_cvt_pk_bf16_f32 v{E}, v{ag}, v{ag+1}")
            a(f"v_cvt_pk_bf16_f32 v{E+1}, v{ag+2}, v{ag+3}")
            a(f"v_cvt_pk_bf16_f32 v{E+2}, v{au}, v{au+1}")
            a(f"v_cvt_pk_bf16_f32 v{E+3}, v{au+2}, v{au+3}")
            for r in range(4):
                src = E + r // 2
                if r % 2 == 0:
                    a(f"v_lshlrev_b32 v{ag+r}, 16, v{src}")
                    a(f"v_lshlrev_b32 v{au+r}, 16, v{src+2}")
                else:
                    a(f"v_and_b32 v{ag+r}, 0xffff0000, v{src}")
                    a(f"v_and_b32 v{au+r}, 0xffff0000, v{src+2}")
            for r in range(4):
                a(f"v_mul_f32 v{E+4+r}, v{ag+r}, v{ag+r}")
            for r in range(4):
                a(f"v_mul_f32 v{E+4+r}, s{s_c2}, v{E+4+r}")
            for r in range(4):
                a(f"v_fma_f32 v{E+4+r}, v{E+4+r}, v{ag+r}, v{ag+r}")
            for r in range(4):
                a(f"v_mul_f32 v{E+4+r}, s{s_c1}, v{E+4+r}")
            for r in range(4):
                a(f"v_exp_f32 v{E+4+r}, v{E+4+r}")
            a("s_nop 0")
            for r in range(4):
                a(f"v_add_f32 v{E+4+r}, 1.0, v{E+4+r}")
            for r in range(4):
                a(f"v_rcp_f32 v{E+4+r}, v{E+4+r}")
            a("s_nop 0")
            for r in range(4):
                a(f"v_mul_f32 v{E+4+r}, v{E+4+r}, v{ag+r}")
            a(f"v_cvt_pk_bf16_f32 v{E}, v{E+4}, v{E+5}")
            a(f"v_cvt_pk_bf16_f32 v{E+1}, v{E+6}, v{E+7}")
            a(f"v_lshlrev_b32 v{E+4}, 16, v{E}")
            a(f"v_and_b32 v{E+5}, 0xffff0000, v{E}")
            a(f"v_lshlrev_b32 v{E+6}, 16, v{E+1}")
            a(f"v_and_b32 v{E+7}, 0xffff0000, v{E+1}")
            for r in range(4):
                a(f"v_mul_f32 v{E+4+r}, v{E+4+r}, v{au+r}")
            a(f"v_cvt_pk_bf16_f32 v{ag}, v{E+4}, v{E+5}")
            a(f"v_cvt_pk_bf16_f32 v{ag+1}, v{E+6}, v{E+7}")
            a(f"global_store_dwordx2 v{v_so}, {vr(ag,2)}, s[{S_OB}:{S_OB+1}] offset:{p*32}")
        if b < 3: a(f"v_add_u32 v{v_so}, {16*3456}, v{v_so}")
    a.label(f"{name}_epd")
    a(f"s_mov_b32 s{s_kc}, 0")
    a(f"s_add_u32 s{s_jobc}, s{s_jobc}, {nwg}")
    type_of(s_jobc, s_typec)
    a(f"s_cmp_lt_u32 s{s_jobc}, {NJOBS1}")
    a(f"s_cbranch_scc1 {name}_loop")
    a("s_waitcnt vmcnt(0) lgkmcnt(0)")
    a.label(f"{name}_end")
    a("s_endpgm")
    return kernel_desc(name, 256, 64, 256)

if __name__ == "__main__":
    a = Asm()
    a.raw(f"; @launch kernel=gemm1_kernel grid=(256,1,1) block=(256,1,1) lds={G1_LDS}")
    a.raw('.amdgcn_target "amdgcn-amd-amdhsa--gfx950"')
    a.raw(".text")
    d = gen_gemm1(a, "gemm1_kernel")
    a.raw('.section .rodata,"a"')
    a.raw(".p2align 6")
    a.raw(d)
    open("gemm1_test.s", "w").write(a.text())
```

```python
from gen_common import *
WS_P2 = 104 * MB
G2_LDS = 4 * 32768
NJOBS2 = 240

def gen_gemm2(a, name, nwg=240):
    kernel_header(a, name)
    V = Alloc(1, 256)
    v_n = V.get("n"); v_g = V.get("g"); v_l = V.get("l")
    v_aoff = V.get("aoff"); v_b0 = V.get("b0"); v_b1 = V.get("b1")
    v_ard = V.get("ard"); v_brd = V.get("brd"); v_ar = V.get("ar"); v_br = V.get("br")
    v_t = V.get("t"); v_t2 = V.get("t2"); v_t3 = V.get("t3"); v_t4 = V.get("t4")
    v_so = V.get("so")
    v_fa = V.get("fa", 32, 4); v_fb = V.get("fb", 32, 4)
    v_acc = V.get("acc", 64, 4)
    v_e = V.get("e", 16, 4)
    s_w, s_wm, s_wn = 3, 4, 5
    S_WO, S_WD, S_WS = 6, 8, 10
    SRD_A, SRD_B = 20, 24
    s_jobl, s_kl, s_slotl, s_nkl = 32, 33, 34, 35
    s_jobc, s_kc, s_slotc, s_nkc = 36, 37, 38, 39
    s_aso, s_bso, s_ars8, s_t0, s_t1, s_t2 = 40, 41, 42, 43, 44, 45
    S_OB = 50
    s_ldone = 52
    a(f"s_cmp_ge_u32 s2, {nwg}")
    a(f"s_cbranch_scc1 {name}_end")
    a("s_load_dwordx2 s[6:7], s[0:1], 40")
    a("s_load_dwordx2 s[8:9], s[0:1], 80")
    a("s_load_dwordx2 s[10:11], s[0:1], 112")
    a(f"v_lshrrev_b32 v{v_t}, 6, v0")
    a(f"v_and_b32 v{v_l}, 63, v0")
    a(f"v_readfirstlane_b32 s{s_w}, v{v_t}")
    a(f"v_and_b32 v{v_n}, 15, v0")
    a(f"v_lshrrev_b32 v{v_g}, 4, v{v_l}")
    a(f"s_lshr_b32 s{s_wm}, s{s_w}, 1")
    a(f"s_and_b32 s{s_wn}, s{s_w}, 1")
    a("s_waitcnt lgkmcnt(0)")
    a(f"s_mov_b32 s{SRD_A+3}, 0x00020000")
    a(f"s_mov_b32 s{SRD_B+3}, 0x00020000")
    a(f"v_and_b32 v{v_t}, 7, v{v_n}")
    a(f"v_xor_b32 v{v_t}, v{v_t}, v{v_g}")
    a(f"v_lshlrev_b32 v{v_t}, 4, v{v_t}")
    a(f"v_lshl_add_u32 v{v_ard}, v{v_n}, 7, v{v_t}")
    a(f"s_lshl_b32 s{s_t0}, s{s_wm}, 13")
    a(f"v_add_u32 v{v_ard}, s{s_t0}, v{v_ard}")
    a(f"v_lshrrev_b32 v{v_t}, 2, v{v_n}")
    a(f"v_and_b32 v{v_t2}, 1, v{v_g}")
    a(f"v_lshl_add_u32 v{v_t2}, v{v_t2}, 2, v{v_t}")
    a(f"v_lshl_add_u32 v{v_t}, v{v_g}, 3, v{v_t}")
    a(f"v_lshlrev_b32 v{v_t}, 8, v{v_t}")
    a(f"v_and_b32 v{v_t3}, 3, v{v_l}")
    a(f"v_lshl_add_u32 v{v_t}, v{v_t3}, 3, v{v_t}")
    a(f"s_lshl_b32 s{s_t0}, s{s_wn}, 2")
    a(f"v_xor_b32 v{v_t2}, s{s_t0}, v{v_t2}")
    a(f"v_lshl_add_u32 v{v_brd}, v{v_t2}, 5, v{v_t}")
    a(f"v_add_u32 v{v_brd}, 16384, v{v_brd}")
    for s_, val in ((s_jobl, "s2"), (s_jobc, "s2"), (s_kl, 0), (s_kc, 0), (s_slotl, 0), (s_slotc, 0), (s_ldone, 0)):
        a(f"s_mov_b32 s{s_}, {val}")

    def part_of(sj, st):
        a(f"s_cmp_ge_u32 s{sj}, 80")
        a(f"s_cselect_b32 s{st}, 1, 0")
        a(f"s_cmp_ge_u32 s{sj}, 160")
        a(f"s_cselect_b32 s{st}, 2, s{st}")

    def load_stage():
        skip = a.newlabel(f"{name}_ls_skip"); nodec = a.newlabel(f"{name}_ls_nodec")
        pb = a.newlabel(f"{name}_ls_pb"); dd = a.newlabel(f"{name}_ls_dd")
        a(f"s_cmp_lg_u32 s{s_ldone}, 0")
        a(f"s_cbranch_scc1 {skip}")
        a(f"s_cmp_lg_u32 s{s_kl}, 0")
        a(f"s_cbranch_scc1 {nodec}")
        part_of(s_jobl, s_t2)
        a(f"s_mul_i32 s{s_t0}, s{s_t2}, 80")
        a(f"s_sub_u32 s{s_t0}, s{s_jobl}, s{s_t0}")
        a(f"s_lshr_b32 s{s_t1}, s{s_t0}, 4")
        a(f"s_and_b32 s{s_t0}, s{s_t0}, 15")
        a(f"s_lshl_b32 s{s_t0}, s{s_t0}, 2")
        a(f"s_add_u32 s{s_t0}, s{s_t0}, s{s_w}")
        a(f"s_lshl_b32 s{s_t0}, s{s_t0}, 5")
        a(f"v_lshlrev_b32 v{v_t}, 1, v{v_g}")
        a(f"v_xor_b32 v{v_t}, v{v_t}, v{v_n}")
        a(f"v_mul_u32_u24 v{v_b0}, 1280, v{v_g}")
        a(f"s_lshl_b32 s{s_t1}, s{s_t1}, 8")
        a(f"v_add_u32 v{v_b0}, s{s_t1}, v{v_b0}")
        a(f"v_lshlrev_b32 v{v_t}, 4, v{v_t}")
        a(f"v_xor_b32 v{v_t2}, 128, v{v_t}")
        a(f"v_add_u32 v{v_b1}, v{v_b0}, v{v_t2}")
        a(f"v_add_u32 v{v_b0}, v{v_b0}, v{v_t}")
        a(f"v_lshrrev_b32 v{v_t}, 3, v{v_l}")
        a(f"v_and_b32 v{v_t2}, 7, v{v_l}")
        a(f"v_xor_b32 v{v_t2}, v{v_t2}, v{v_t}")
        a(f"v_lshlrev_b32 v{v_t2}, 4, v{v_t2}")
        a(f"s_cmp_eq_u32 s{s_t2}, 2")
        a(f"s_cbranch_scc1 {pb}")
        a(f"s_add_u32 s{SRD_A}, s{S_WS}, {WS_O}")
        a(f"s_addc_u32 s{SRD_A+1}, s{S_WS+1}, 0")
        a(f"s_and_b32 s{SRD_A+1}, s{SRD_A+1}, 0xffff")
        a(f"s_mov_b32 s{SRD_A+2}, {2048*8192}")
        a(f"s_mov_b32 s{SRD_B}, s{S_WO}")
        a(f"s_and_b32 s{SRD_B+1}, s{S_WO+1}, 0xffff")
        a(f"s_mov_b32 s{SRD_B+2}, {4096*1280}")
        a(f"s_lshl_b32 s{s_aso}, s{s_t0}, 13")
        a(f"s_lshl_b32 s{s_t1}, s{s_t2}, 12")
        a(f"s_add_u32 s{s_aso}, s{s_aso}, s{s_t1}")
        a(f"s_mov_b32 s{s_ars8}, {8*8192}")
        a(f"s_mul_i32 s{s_bso}, s{s_t2}, {2048*1280}")
        a(f"s_mov_b32 s{s_nkl}, 32")
        a(f"v_lshl_add_u32 v{v_aoff}, v{v_t}, 13, v{v_t2}")
        a(f"s_branch {dd}")
        a.label(pb)
        a(f"s_add_u32 s{SRD_A}, s{S_WS}, {WS_H}")
        a(f"s_addc_u32 s{SRD_A+1}, s{S_WS+1}, 0")
        a(f"s_and_b32 s{SRD_A+1}, s{SRD_A+1}, 0xffff")
        a(f"s_mov_b32 s{SRD_A+2}, {2048*3456}")
        a(f"s_mov_b32 s{SRD_B}, s{S_WD}")
        a(f"s_and_b32 s{SRD_B+1}, s{S_WD+1}, 0xffff")
        a(f"s_mov_b32 s{SRD_B+2}, {1728*1280}")
        a(f"s_mul_i32 s{s_aso}, s{s_t0}, 3456")
        a(f"s_mov_b32 s{s_ars8}, {8*3456}")
        a(f"s_mov_b32 s{s_bso}, 0")
        a(f"s_mov_b32 s{s_nkl}, 27")
        a(f"v_mul_u32_u24 v{v_aoff}, 3456, v{v_t}")
        a(f"v_add_u32 v{v_aoff}, v{v_aoff}, v{v_t2}")
        a.label(dd)
        a(f"s_mul_i32 s{s_t0}, s{s_w}, {16*1280}")
        a(f"s_add_u32 s{s_bso}, s{s_bso}, s{s_t0}")
        a.label(nodec)
        a(f"s_lshl_b32 s{s_t0}, s{s_w}, 12")
        a(f"s_add_u32 s{s_t0}, s{s_t0}, s{s_slotl}")
        a(f"s_mov_b32 s{s_t1}, s{s_aso}")
        for i in range(4):
            a(f"s_add_u32 m0, s{s_t0}, {i*1024}")
            if i: a(f"s_add_u32 s{s_t1}, s{s_t1}, s{s_ars8}")
            else: a("s_nop 0")
            a(f"buffer_load_dwordx4 v{v_aoff}, s[{SRD_A}:{SRD_A+3}], s{s_t1} offen lds")
        a(f"s_add_u32 s{s_aso}, s{s_aso}, 128")
        a(f"s_add_u32 s{s_t0}, s{s_t0}, 16384")
        for i in range(4):
            a(f"s_add_u32 m0, s{s_t0}, {i*1024}")
            a(f"s_add_u32 s{s_t1}, s{s_bso}, {i*4*1280}")
            a(f"buffer_load_dwordx4 v{v_b0 if i < 2 else v_b1}, s[{SRD_B}:{SRD_B+3}], s{s_t1} offen lds")
        a(f"s_add_u32 s{s_bso}, s{s_bso}, {64*1280}")
        a(f"s_add_u32 s{s_slotl}, s{s_slotl}, 32768")
        a(f"s_and_b32 s{s_slotl}, s{s_slotl}, {4*32768-1}")
        a(f"s_add_u32 s{s_kl}, s{s_kl}, 1")
        a(f"s_cmp_lt_u32 s{s_kl}, s{s_nkl}")
        a(f"s_cbranch_scc1 {skip}")
        a(f"s_mov_b32 s{s_kl}, 0")
        a(f"s_add_u32 s{s_jobl}, s{s_jobl}, {nwg}")
        a(f"s_cmp_ge_u32 s{s_jobl}, {NJOBS2}")
        a(f"s_cselect_b32 s{s_ldone}, 1, 0")
        a.label(skip)

    def read_frags(st, ks):
        for b in range(4):
            areg = v_ar if ks == 0 else v_t4
            a(f"ds_read_b128 {vr(v_fa + st*16 + 4*b, 4)}, v{areg} offset:{b*2048}")
        for t in range(4):
            a(f"ds_read_b64_tr_b16 {vr(v_fb + st*16 + 4*t, 2)}, v{v_e + 8 + t} offset:{ks*8192}")
            a(f"ds_read_b64_tr_b16 {vr(v_fb + st*16 + 4*t + 2, 2)}, v{v_e + 8 + t} offset:{ks*8192 + 1024}")
    def set_addr():
        a(f"v_add_u32 v{v_ar}, s{s_slotc}, v{v_ard}")
        a(f"v_xor_b32 v{v_t4}, 64, v{v_ar}")
        a(f"v_add_u32 v{v_br}, s{s_slotc}, v{v_brd}")
        for t in range(4):
            a(f"v_xor_b32 v{v_e + 8 + t}, {t*32}, v{v_br}")
    def mfmas(st, first):
        for b in range(4):
            for t in range(4):
                acc = vr(v_acc + (t*4 + b)*4, 4)
                A = vr(v_fa + st*16 + 4*b, 4); Bf = vr(v_fb + st*16 + 4*t, 4)
                a(f"v_mfma_f32_16x16x32_bf16 {acc}, {Bf}, {A}, {'0' if first else acc}")
    def nk_of():
        a(f"s_cmp_ge_u32 s{s_jobc}, 160")
        a(f"s_cselect_b32 s{s_nkc}, 27, 32")
    for i in range(4):
        load_stage()
    nk_of()
    a("s_waitcnt vmcnt(24)")
    a("s_barrier")
    set_addr()
    read_frags(0, 0)
    a.label(f"{name}_loop")
    read_frags(1, 1)
    a("s_waitcnt lgkmcnt(12)")
    a(f"s_cmp_eq_u32 s{s_kc}, 0")
    a(f"s_cbranch_scc1 {name}_f1")
    mfmas(0, False)
    a(f"s_branch {name}_f2")
    a.label(f"{name}_f1")
    mfmas(0, True)
    a.label(f"{name}_f2")
    a(f"s_cmp_lg_u32 s{s_ldone}, 0")
    a(f"s_cbranch_scc1 {name}_w0")
    a("s_waitcnt vmcnt(16) lgkmcnt(0)")
    a(f"s_branch {name}_w1")
    a.label(f"{name}_w0")
    a("s_waitcnt vmcnt(0) lgkmcnt(0)")
    a.label(f"{name}_w1")
    a("s_barrier")
    load_stage()
    a(f"s_add_u32 s{s_slotc}, s{s_slotc}, 32768")
    a(f"s_and_b32 s{s_slotc}, s{s_slotc}, {4*32768-1}")
    set_addr()
    read_frags(0, 0)
    mfmas(1, False)
    a(f"s_add_u32 s{s_kc}, s{s_kc}, 1")
    a(f"s_cmp_lt_u32 s{s_kc}, s{s_nkc}")
    a(f"s_cbranch_scc1 {name}_loop")
    part_of(s_jobc, s_t2)
    a(f"s_mul_i32 s{s_t0}, s{s_t2}, 80")
    a(f"s_sub_u32 s{s_t0}, s{s_jobc}, s{s_t0}")
    a(f"s_lshr_b32 s{s_t1}, s{s_t0}, 4")
    a(f"s_and_b32 s{s_t0}, s{s_t0}, 15")
    a(f"s_mul_i32 s{s_t2}, s{s_t2}, {2048*2560}")
    a(f"s_lshl_b32 s{s_t0}, s{s_t0}, 1")
    a(f"s_add_u32 s{s_t0}, s{s_t0}, s{s_wm}")
    a(f"s_mul_i32 s{s_t0}, s{s_t0}, {64*2560}")
    a(f"s_add_u32 s{s_t2}, s{s_t2}, s{s_t0}")
    a(f"s_lshl_b32 s{s_t1}, s{s_t1}, 1")
    a(f"s_add_u32 s{s_t1}, s{s_t1}, s{s_wn}")
    a(f"s_lshl_b32 s{s_t1}, s{s_t1}, 8")
    a(f"s_add_u32 s{s_t2}, s{s_t2}, s{s_t1}")
    a(f"s_add_u32 s{s_t2}, s{s_t2}, {WS_P2}")
    a(f"s_add_u32 s{S_OB}, s{S_WS}, s{s_t2}")
    a(f"s_addc_u32 s{S_OB+1}, s{S_WS+1}, 0")
    a(f"v_mul_u32_u24 v{v_so}, 2560, v{v_n}")
    a(f"v_lshl_add_u32 v{v_so}, v{v_g}, 4, v{v_so}")
    for b in range(4):
        for t in range(4):
            ac = v_acc + (t*4 + b)*4
            a(f"global_store_dwordx4 v{v_so}, {vr(ac,4)}, s[{S_OB}:{S_OB+1}] offset:{t*64}")
        if b < 3:
            a("s_nop 0")
            a(f"v_add_u32 v{v_so}, {16*2560}, v{v_so}")
    a(f"s_mov_b32 s{s_kc}, 0")
    a(f"s_add_u32 s{s_jobc}, s{s_jobc}, {nwg}")
    nk_of()
    a(f"s_cmp_lt_u32 s{s_jobc}, {NJOBS2}")
    a(f"s_cbranch_scc1 {name}_loop")
    a("s_waitcnt vmcnt(0) lgkmcnt(0)")
    a.label(f"{name}_end")
    a("s_endpgm")
    return kernel_desc(name, 256, 64, 256)

import struct
def f32bits(x):
    return struct.unpack("<I", struct.pack("<f", x))[0]

def gen_combine(a, name):
    kernel_header(a, name)
    v_l, v_t, v_t2, v_o = 1, 2, 3, 4
    v_x = 8; v_gw = 16; v_a0 = 24; v_a1 = 36; v_b = 48; v_r = 60
    s_w = 3
    a("s_cmp_ge_u32 s2, 512")
    a(f"s_cbranch_scc1 {name}_end")
    a("s_load_dwordx2 s[6:7], s[0:1], 0")
    a("s_load_dwordx2 s[8:9], s[0:1], 88")
    a("s_load_dwordx2 s[10:11], s[0:1], 96")
    a("s_load_dwordx2 s[12:13], s[0:1], 112")
    a(f"v_lshrrev_b32 v{v_t}, 6, v0")
    a(f"v_and_b32 v{v_l}, 63, v0")
    a(f"v_readfirstlane_b32 s{s_w}, v{v_t}")
    a("s_lshl_b32 s4, s2, 2")
    a(f"s_add_u32 s4, s4, s{s_w}")
    a("s_waitcnt lgkmcnt(0)")
    a("s_mul_i32 s5, s4, 1280")
    a("s_add_u32 s6, s6, s5"); a("s_addc_u32 s7, s7, 0")
    a("s_add_u32 s10, s10, s5"); a("s_addc_u32 s11, s11, 0")
    a("s_mul_i32 s5, s4, 2560")
    a(f"s_add_u32 s5, s5, {WS_P2}")
    a("s_add_u32 s12, s12, s5"); a("s_addc_u32 s13, s13, 0")
    a(f"s_add_u32 s14, s12, {2048*2560}"); a("s_addc_u32 s15, s13, 0")
    a(f"s_add_u32 s16, s14, {2048*2560}"); a("s_addc_u32 s17, s15, 0")
    a(f"v_lshlrev_b32 v{v_o}, 2, v{v_l}")
    a(f"v_lshlrev_b32 v{v_t2}, 3, v{v_l}")
    for i in range(5):
        a(f"global_load_dword v{v_x+i}, v{v_o}, s[6:7] offset:{i*256}")
        a(f"global_load_dword v{v_gw+i}, v{v_o}, s[8:9] offset:{i*256}")
    for i in range(5):
        a(f"global_load_dwordx2 {vr(v_a0+2*i,2)}, v{v_t2}, s[12:13] offset:{i*512}")
        a(f"global_load_dwordx2 {vr(v_a1+2*i,2)}, v{v_t2}, s[14:15] offset:{i*512}")
        a(f"global_load_dwordx2 {vr(v_b+2*i,2)}, v{v_t2}, s[16:17] offset:{i*512}")
    a("s_waitcnt vmcnt(15)")
    a(f"v_mov_b32 v{v_t}, 0")
    for i in range(5):
        a(f"v_lshlrev_b32 v{v_r}, 16, v{v_x+i}")
        a(f"v_lshlrev_b32 v{v_r+1}, 16, v{v_gw+i}")
        a(f"v_and_b32 v{v_r+2}, 0xffff0000, v{v_x+i}")
        a(f"v_and_b32 v{v_r+3}, 0xffff0000, v{v_gw+i}")
        a(f"v_mul_f32 v{v_r}, v{v_r}, v{v_r+1}")
        a(f"v_mul_f32 v{v_r+2}, v{v_r+2}, v{v_r+3}")
        a(f"v_cvt_pk_bf16_f32 v{v_r}, v{v_r}, v{v_r+2}")
        a(f"v_lshlrev_b32 v{v_r+1}, 16, v{v_r}")
        a(f"v_and_b32 v{v_r}, 0xffff0000, v{v_r}")
        a(f"v_add_f32 v{v_t}, v{v_t}, v{v_r+1}")
        a(f"v_add_f32 v{v_t}, v{v_t}, v{v_r}")
    for off in (0x041F, 0x081F, 0x101F, 0x201F):
        a(f"ds_swizzle_b32 v{v_t2}, v{v_t} offset:{off}")
        a("s_waitcnt lgkmcnt(0)")
        a(f"v_add_f32 v{v_t}, v{v_t}, v{v_t2}")
    for op in ("v_permlane16_swap_b32", "v_permlane32_swap_b32"):
        a(f"v_mov_b32 v{v_t2}, v{v_t}")
        a("s_nop 1")
        a(f"{op} v{v_t}, v{v_t2}")
        a(f"v_add_f32 v{v_t}, v{v_t}, v{v_t2}")
    a(f"v_cvt_pk_bf16_f32 v{v_t}, v{v_t}, v{v_t}")
    a(f"v_lshlrev_b32 v{v_t}, 16, v{v_t}")
    a(f"v_mul_f32 v{v_t}, 0x{f32bits(-1.4426950408889634):08x}, v{v_t}")
    a(f"v_exp_f32 v{v_t}, v{v_t}")
    a("s_nop 0")
    a(f"v_add_f32 v{v_t}, 1.0, v{v_t}")
    a(f"v_rcp_f32 v{v_t}, v{v_t}")
    a("s_nop 0")
    a(f"v_cvt_pk_bf16_f32 v{v_t}, v{v_t}, v{v_t}")
    a(f"v_lshlrev_b32 v{v_t}, 16, v{v_t}")
    a(f"v_sub_f32 v{v_t2}, 1.0, v{v_t}")
    a(f"v_cvt_pk_bf16_f32 v{v_t2}, v{v_t2}, v{v_t2}")
    a(f"v_lshlrev_b32 v{v_t2}, 16, v{v_t2}")
    a("s_waitcnt vmcnt(0)")
    for i in range(5):
        A0 = v_a0 + 2*i; A1 = v_a1 + 2*i; Bq = v_b + 2*i
        a(f"v_add_f32 v{A0}, v{A0}, v{A1}")
        a(f"v_add_f32 v{A0+1}, v{A0+1}, v{A1+1}")
        a(f"v_cvt_pk_bf16_f32 v{v_r}, v{A0}, v{A0+1}")
        a(f"v_cvt_pk_bf16_f32 v{v_r+1}, v{Bq}, v{Bq+1}")
        a(f"v_lshlrev_b32 v{A0}, 16, v{v_r}")
        a(f"v_and_b32 v{A0+1}, 0xffff0000, v{v_r}")
        a(f"v_lshlrev_b32 v{Bq}, 16, v{v_r+1}")
        a(f"v_and_b32 v{Bq+1}, 0xffff0000, v{v_r+1}")
        a(f"v_mul_f32 v{A0}, v{A0}, v{v_t}")
        a(f"v_mul_f32 v{A0+1}, v{A0+1}, v{v_t}")
        a(f"v_mul_f32 v{Bq}, v{Bq}, v{v_t2}")
        a(f"v_mul_f32 v{Bq+1}, v{Bq+1}, v{v_t2}")
        a(f"v_cvt_pk_bf16_f32 v{v_r}, v{A0}, v{A0+1}")
        a(f"v_cvt_pk_bf16_f32 v{v_r+1}, v{Bq}, v{Bq+1}")
        a(f"v_lshlrev_b32 v{A0}, 16, v{v_r}")
        a(f"v_and_b32 v{A0+1}, 0xffff0000, v{v_r}")
        a(f"v_lshlrev_b32 v{Bq}, 16, v{v_r+1}")
        a(f"v_and_b32 v{Bq+1}, 0xffff0000, v{v_r+1}")
        a(f"v_add_f32 v{A0}, v{A0}, v{Bq}")
        a(f"v_add_f32 v{A0+1}, v{A0+1}, v{Bq+1}")
        a(f"v_cvt_pk_bf16_f32 v{A1}, v{A0}, v{A0+1}")
        a(f"global_store_dword v{v_o}, v{A1}, s[10:11] offset:{i*256}")
    a("s_waitcnt vmcnt(0)")
    a.label(f"{name}_end")
    a("s_endpgm")
    return kernel_desc(name, 64, 32, 64)
```

```python
from gen_common import *

MSTRIDE = 1312
LDS_MEM = 0
LDS_SP  = 10496
SPSTRIDE = 208
LDS_VP  = LDS_SP + 32 * SPSTRIDE
LDS_RED = LDS_VP + 2048
REC_LDS = 3 * 40960
SPIN_MAX = 1 << 20
SCALE_LOG2E = 128 ** -0.5 * 1.4426950408889634

import struct
def f32bits(x):
    return struct.unpack("<I", struct.pack("<f", x))[0]

def gen_rec(a, name, nsteps=64, prof=False):
    NST = 10
    def stamp(i):
        if prof:
            a(f"s_memtime s[{64+2*i}:{65+2*i}]")
            a("s_waitcnt lgkmcnt(0)")
    kernel_header(a, name)
    def wq(t, ks): return ar((t * 20 + ks) * 4, 4)
    def wk(t, ks):
        i = t * 20 + ks
        if i < 24: return ar(160 + i * 4, 4)
        return vr(112 + (i - 24) * 4, 4)
    def wk2(t, ks, half):
        i = t * 20 + ks
        if i < 24: return ar(160 + i * 4 + 2 * half, 2)
        return vr(112 + (i - 24) * 4 + 2 * half, 2)
    def wv(i): return vr(176 + i * 4, 4)
    def wo(t): return vr(216 + t * 4, 4)
    V = Alloc(1, 112)
    v_l = V.get("l"); v_n = V.get("n"); v_g = V.get("g")
    v_fr = V.get("fragaddr")
    v_g0 = V.get("g0"); v_g1 = V.get("g1"); v_g2 = V.get("g2")
    v_w0 = V.get("w0"); v_w1 = V.get("w1"); v_w2 = V.get("w2")
    v_spw = V.get("spw"); v_spr = V.get("spr"); v_vpw = V.get("vpw"); v_vpr = V.get("vpr")
    v_kt = V.get("ktoff"); v_vt = V.get("vtoff"); v_km = V.get("kmoff"); v_vm = V.get("vmoff")
    v_part = V.get("partoff"); v_t = V.get("t"); v_t2 = V.get("t2"); v_t3 = V.get("t3")
    v_redw = V.get("redw"); v_redr = V.get("redr"); v_pub = V.get("pub")
    v_frag = V.get("frag", 16, 4)
    v_acc = V.get("acc", 20, 4)
    v_kf = V.get("kf", 4, 4)
    v_ktk = V.get("ktok", 8, 4)
    v_qf = V.get("qf", 4, 4)
    v_vtk = V.get("vtok", 8, 4)
    v_s = V.get("s", 12, 4)
    v_p = V.get("p", 6, 2)
    v_vf = V.get("vf", 4, 2)
    v_big = v_frag
    v_stmp = v_acc
    s_h, s_j, s_w = 3, 4, 5
    S_MEM0, S_WQ, S_WK, S_WV, S_WO, S_WS = 6, 8, 10, 12, 14, 16
    S_KT, S_VT, S_KM, S_VM, S_MB, S_PT = 18, 20, 22, 24, 26, 28
    s_step = 30; s_t0 = 31
    S_MN8, S_MG2, S_TB, S_TB2 = 32, 34, 36, 38
    s_spin = 40; s_t1 = 41; s_c = 42; s_t2 = 43; S_SV = 44; S_PB = 46; S_MBS = 48

    a("s_cmp_ge_u32 s2, 128")
    a(f"s_cbranch_scc1 {name}_end")
    a("s_load_dwordx2 s[6:7], s[0:1], 8")
    a("s_load_dwordx4 s[8:11], s[0:1], 16")
    a("s_load_dwordx4 s[12:15], s[0:1], 32")
    a("s_load_dwordx2 s[16:17], s[0:1], 112")
    a(f"s_lshr_b32 s{s_h}, s2, 2")
    a(f"s_and_b32 s{s_j}, s2, 3")
    a(f"v_lshrrev_b32 v{v_t}, 6, v0")
    a(f"v_and_b32 v{v_l}, 63, v0")
    a(f"v_readfirstlane_b32 s{s_w}, v{v_t}")
    a(f"v_and_b32 v{v_n}, 15, v0")
    a(f"v_lshrrev_b32 v{v_g}, 4, v{v_l}")
    a(f"v_cmp_gt_u32 s[{S_MN8}:{S_MN8+1}], 8, v{v_n}")
    a(f"v_cmp_gt_u32 s[{S_MG2}:{S_MG2+1}], 2, v{v_g}")
    a("s_waitcnt lgkmcnt(0)")
    for (sb, off) in ((S_KT, WS_K), (S_VT, WS_VT), (S_KM, WS_KMEM), (S_VM, WS_VMEMT), (S_MB, WS_MEMB), (S_PT, WS_PART)):
        a(f"s_add_u32 s{sb}, s{S_WS}, {off}")
        a(f"s_addc_u32 s{sb+1}, s{S_WS+1}, 0")
    v_sg = v_g0; v_sl = v_g1; v_tq = v_w0; v_tk = v_w1; v_tv = v_w2
    a(f"v_lshrrev_b32 v{v_sg}, 4, v0")
    a(f"v_lshlrev_b32 v{v_sg}, 13, v{v_sg}")
    a(f"v_lshlrev_b32 v{v_t}, 4, v{v_n}")
    a(f"v_add_u32 v{v_sg}, v{v_sg}, v{v_t}")
    a(f"s_lshl_b32 s{s_t0}, s{s_h}, 8")
    a(f"v_add_u32 v{v_sg}, s{s_t0}, v{v_sg}")
    a(f"v_lshlrev_b32 v{v_sl}, 4, v0")
    a(f"v_lshrrev_b32 v{v_t}, 2, v{v_n}")
    a(f"v_lshl_add_u32 v{v_t}, v{v_g}, 3, v{v_t}")
    a(f"v_lshlrev_b32 v{v_t}, 8, v{v_t}")
    a(f"v_and_b32 v{v_t2}, 3, v0")
    a(f"v_lshl_add_u32 v{v_t}, v{v_t2}, 3, v{v_t}")
    a(f"s_lshl_b32 s{s_t0}, s{s_w}, 6")
    a(f"v_add_u32 v{v_tq}, s{s_t0}, v{v_t}")
    a(f"v_add_u32 v{v_tk}, 40960, v{v_tq}")
    a(f"s_and_b32 s{s_t0}, s{s_w}, 1")
    a(f"s_lshl_b32 s{s_t0}, s{s_t0}, 5")
    a(f"s_lshl_b32 s{s_t1}, s{s_j}, 6")
    a(f"s_add_u32 s{s_t0}, s{s_t0}, s{s_t1}")
    a(f"s_add_u32 s{s_t0}, s{s_t0}, 81920")
    a(f"v_add_u32 v{v_tv}, s{s_t0}, v{v_t}")
    for rnd in range(4):
        for m, sb in enumerate((S_WQ, S_WK, S_WV)):
            for i in range(10):
                off = (160 * rnd + 16 * i) * 8192
                a(f"s_add_u32 s{S_TB}, s{sb}, {off}")
                a(f"s_addc_u32 s{S_TB+1}, s{sb+1}, 0")
                a(f"global_load_dwordx4 {vr(v_big + 4*i, 4)}, v{v_sg}, s[{S_TB}:{S_TB+1}]")
            for i in range(10):
                a(f"s_waitcnt vmcnt({9-i})")
                a(f"ds_write_b128 v{v_sl}, {vr(v_big + 4*i, 4)} offset:{i*4096}" if m == 0 else
                  f"ds_write_b128 v{v_t3}, {vr(v_big + 4*i, 4)} offset:{i*4096}")
            a(f"v_add_u32 v{v_t3}, {40960*(m+1)}, v{v_sl}")
        a("s_waitcnt lgkmcnt(0)")
        a("s_barrier")
        for ksl in range(5):
            ks = rnd * 5 + ksl
            for t in range(2):
                i = t * 20 + ks
                a(f"ds_read_b64_tr_b16 {ar(i*4, 2)}, v{v_tq} offset:{ksl*8192 + 32*t}")
                a(f"ds_read_b64_tr_b16 {ar(i*4+2, 2)}, v{v_tq} offset:{ksl*8192 + 32*t + 1024}")
                a(f"ds_read_b64_tr_b16 {wk2(t, ks, 0)}, v{v_tk} offset:{ksl*8192 + 32*t}")
                a(f"ds_read_b64_tr_b16 {wk2(t, ks, 1)}, v{v_tk} offset:{ksl*8192 + 32*t + 1024}")
        lab = a.newlabel("L_skipv")
        a(f"s_lshr_b32 s{s_t0}, s{s_w}, 1")
        a(f"s_cmp_lg_u32 s{s_t0}, {rnd >> 1}")
        a(f"s_cbranch_scc1 {lab}")
        for ksl in range(5):
            i = (rnd & 1) * 5 + ksl
            a(f"ds_read_b64_tr_b16 {vr(176 + i*4, 2)}, v{v_tv} offset:{ksl*8192}")
            a(f"ds_read_b64_tr_b16 {vr(176 + i*4 + 2, 2)}, v{v_tv} offset:{ksl*8192 + 1024}")
        a.label(lab)
        a("s_waitcnt lgkmcnt(0)")
        a("s_barrier")
    a(f"s_lshl_b32 s{s_t0}, s2, 5")
    a(f"s_mul_i32 s{s_t0}, s{s_t0}, 1280")
    a(f"s_add_u32 s{S_TB}, s{S_WO}, s{s_t0}")
    a(f"s_addc_u32 s{S_TB+1}, s{S_WO+1}, 0")
    for i in range(10):
        a(f"v_add_u32 v{v_t2}, {i*4096}, v{v_sl}")
        a(f"global_load_dwordx4 {vr(v_big + 4*i, 4)}, v{v_t2}, s[{S_TB}:{S_TB+1}]")
    for i in range(10):
        a(f"s_waitcnt vmcnt({9-i})")
        a(f"ds_write_b128 v{v_sl}, {vr(v_big + 4*i, 4)} offset:{i*4096}")
    a("s_waitcnt lgkmcnt(0)")
    a("s_barrier")
    a(f"v_lshrrev_b32 v{v_t}, 2, v{v_n}")
    a(f"v_lshl_add_u32 v{v_t}, v{v_g}, 2, v{v_t}")
    a(f"v_mul_u32_u24 v{v_t}, 1280, v{v_t}")
    a(f"v_and_b32 v{v_t2}, 3, v0")
    a(f"v_lshl_add_u32 v{v_t}, v{v_t2}, 3, v{v_t}")
    a(f"s_mul_i32 s{s_t0}, s{s_w}, 320")
    a(f"v_add_u32 v{v_t}, s{s_t0}, v{v_t}")
    for t in range(10):
        a(f"ds_read_b64_tr_b16 {vr(216 + t*4, 2)}, v{v_t} offset:{32*t}")
        a(f"ds_read_b64_tr_b16 {vr(216 + t*4 + 2, 2)}, v{v_t} offset:{32*t + 16*1280}")
    a("s_waitcnt lgkmcnt(0)")
    a("s_barrier")
    a(f"v_and_b32 v{v_t}, 7, v0")
    a(f"v_mul_u32_u24 v{v_fr}, {MSTRIDE}, v{v_t}")
    a(f"v_lshl_add_u32 v{v_fr}, v{v_g}, 4, v{v_fr}")
    a(f"v_lshlrev_b32 v{v_g0}, 4, v0")
    a(f"v_add_u32 v{v_g1}, 4096, v{v_g0}")
    a(f"v_add_u32 v{v_g2}, 8192, v{v_g0}")
    a(f"v_mul_u32_u24 v{v_w0}, {MSTRIDE}, v{v_t}")
    a(f"v_lshrrev_b32 v{v_t2}, 3, v0")
    a(f"v_lshl_add_u32 v{v_w0}, v{v_t2}, 4, v{v_w0}")
    a(f"v_add_u32 v{v_w1}, 512, v{v_w0}")
    a(f"v_add_u32 v{v_w2}, 1024, v{v_w0}")
    a(f"v_mul_u32_u24 v{v_spw}, {SPSTRIDE}, v{v_n}")
    a(f"v_lshl_add_u32 v{v_spw}, v{v_g}, 4, v{v_spw}")
    a(f"s_mul_i32 s{s_t0}, s{s_w}, {8*SPSTRIDE}")
    a(f"s_add_u32 s{s_t0}, s{s_t0}, {LDS_SP}")
    a(f"v_add_u32 v{v_spw}, s{s_t0}, v{v_spw}")
    a(f"v_mul_u32_u24 v{v_spr}, {SPSTRIDE}, v{v_t}")
    a(f"v_lshl_add_u32 v{v_spr}, v{v_g}, 4, v{v_spr}")
    a(f"v_add_u32 v{v_spr}, {LDS_SP}, v{v_spr}")
    a(f"v_lshlrev_b32 v{v_vpw}, 5, v{v_n}")
    a(f"v_and_b32 v{v_t2}, 1, v{v_g}")
    a(f"v_lshl_add_u32 v{v_vpr}, v{v_t2}, 4, v{v_vpw}")
    a(f"v_add_u32 v{v_vpr}, {LDS_VP}, v{v_vpr}")
    a(f"v_lshl_add_u32 v{v_vpw}, v{v_g}, 4, v{v_vpw}")
    a(f"s_lshl_b32 s{s_t0}, s{s_w}, 9")
    a(f"s_add_u32 s{s_t0}, s{s_t0}, {LDS_VP}")
    a(f"v_add_u32 v{v_vpw}, s{s_t0}, v{v_vpw}")
    a(f"v_lshlrev_b32 v{v_kt}, 13, v{v_n}")
    a(f"v_lshl_add_u32 v{v_kt}, v{v_g}, 3, v{v_kt}")
    a(f"s_lshl_b32 s{s_t0}, s{s_h}, 8")
    a(f"s_lshl_b32 s{s_t1}, s{s_w}, 6")
    a(f"s_add_u32 s{s_t0}, s{s_t0}, s{s_t1}")
    a(f"v_add_u32 v{v_kt}, s{s_t0}, v{v_kt}")
    a(f"v_lshlrev_b32 v{v_vt}, 12, v{v_n}")
    a(f"v_lshl_add_u32 v{v_vt}, v{v_g}, 3, v{v_vt}")
    a(f"s_lshl_b32 s{s_t0}, s2, 17")
    a(f"v_add_u32 v{v_vt}, s{s_t0}, v{v_vt}")
    a(f"v_lshlrev_b32 v{v_km}, 13, v{v_n}")
    a(f"v_lshl_add_u32 v{v_km}, v{v_g}, 3, v{v_km}")
    a(f"s_lshl_b32 s{s_t0}, s2, 6")
    a(f"v_add_u32 v{v_km}, s{s_t0}, v{v_km}")
    a(f"v_lshlrev_b32 v{v_vm}, 4, v{v_n}")
    a(f"v_lshl_add_u32 v{v_vm}, v{v_g}, 3, v{v_vm}")
    a(f"s_lshl_b32 s{s_t0}, s2, 9")
    a(f"v_add_u32 v{v_vm}, s{s_t0}, v{v_vm}")
    a(f"v_lshrrev_b32 v{v_part}, 1, v{v_g}")
    a(f"v_lshlrev_b32 v{v_part}, 15, v{v_part}")
    a(f"v_lshl_add_u32 v{v_part}, v{v_n}, 5, v{v_part}")
    a(f"v_and_b32 v{v_t2}, 1, v{v_g}")
    a(f"v_lshl_add_u32 v{v_part}, v{v_t2}, 4, v{v_part}")
    a(f"s_mul_i32 s{s_t0}, s{s_w}, {20*32768}")
    a(f"s_lshl_b32 s{s_t1}, s2, 8")
    a(f"s_add_u32 s{s_t0}, s{s_t0}, s{s_t1}")
    a(f"v_add_u32 v{v_part}, s{s_t0}, v{v_part}")
    a(f"v_lshlrev_b32 v{v_redw}, 4, v0")
    a(f"v_add_u32 v{v_redw}, {LDS_RED}, v{v_redw}")
    a(f"v_lshlrev_b32 v{v_redr}, 3, v{v_l}")
    a(f"v_add_u32 v{v_redr}, {LDS_RED}, v{v_redr}")
    a(f"v_lshlrev_b32 v{v_pub}, 2, v{v_l}")
    a(f"s_lshl_b32 s{s_t0}, s2, 7")
    a(f"v_add_u32 v{v_pub}, s{s_t0}, v{v_pub}")
    a(f"s_mov_b32 s{s_c}, {f32bits(SCALE_LOG2E)}")
    a(f"s_mov_b32 s{s_step}, 0")
    a(f"s_and_b32 s{s_t0}, s2, {RC-1}")
    a(f"s_mul_i32 s{s_t0}, s{s_t0}, 10240")
    a(f"s_add_u32 s{S_MBS}, s{S_MB}, s{s_t0}")
    a(f"s_addc_u32 s{S_MBS+1}, s{S_MB+1}, 0")

    a.label(f"{name}_loop")
    stamp(0)
    a(f"s_lshl_b32 s{s_t0}, s{s_step}, 18")
    a(f"s_add_u32 s{S_TB}, s{S_KT}, s{s_t0}")
    a(f"s_addc_u32 s{S_TB+1}, s{S_KT+1}, 0")
    a(f"v_add_u32 v{v_t}, 0x20000, v{v_kt}")
    a(f"global_load_dwordx2 {vr(v_ktk, 2)}, v{v_kt}, s[{S_TB}:{S_TB+1}]")
    a(f"global_load_dwordx2 {vr(v_ktk+2, 2)}, v{v_kt}, s[{S_TB}:{S_TB+1}] offset:32")
    a(f"global_load_dwordx2 {vr(v_ktk+4, 2)}, v{v_t}, s[{S_TB}:{S_TB+1}]")
    a(f"global_load_dwordx2 {vr(v_ktk+6, 2)}, v{v_t}, s[{S_TB}:{S_TB+1}] offset:32")
    a(f"s_lshl_b32 s{s_t0}, s{s_step}, 6")
    a(f"s_add_u32 s{S_TB}, s{S_VT}, s{s_t0}")
    a(f"s_addc_u32 s{S_TB+1}, s{S_VT+1}, 0")
    a(f"v_add_u32 v{v_t}, 0x10000, v{v_vt}")
    a(f"global_load_dwordx2 {vr(v_vtk, 2)}, v{v_vt}, s[{S_TB}:{S_TB+1}]")
    a(f"global_load_dwordx2 {vr(v_vtk+2, 2)}, v{v_vt}, s[{S_TB}:{S_TB+1}] offset:32")
    a(f"global_load_dwordx2 {vr(v_vtk+4, 2)}, v{v_t}, s[{S_TB}:{S_TB+1}]")
    a(f"global_load_dwordx2 {vr(v_vtk+6, 2)}, v{v_t}, s[{S_TB}:{S_TB+1}] offset:32")
    F = v_frag
    a(f"s_cmp_lg_u32 s{s_step}, 0")
    a(f"s_cbranch_scc1 {name}_poll")
    a(f"v_and_b32 v{v_t}, 7, v0")
    a(f"v_mul_u32_u24 v{v_t}, 1280, v{v_t}")
    a(f"v_lshrrev_b32 v{v_t2}, 3, v0")
    a(f"v_lshl_add_u32 v{v_t}, v{v_t2}, 4, v{v_t}")
    a(f"global_load_dwordx4 {vr(F, 4)}, v{v_t}, s[{S_MEM0}:{S_MEM0+1}]")
    a(f"global_load_dwordx4 {vr(F+4, 4)}, v{v_t}, s[{S_MEM0}:{S_MEM0+1}] offset:512")
    a(f"s_cmp_ge_u32 s{s_w}, 2")
    a(f"s_cbranch_scc1 {name}_g0a")
    a(f"global_load_dwordx4 {vr(F+8, 4)}, v{v_t}, s[{S_MEM0}:{S_MEM0+1}] offset:1024")
    a.label(f"{name}_g0a")
    a("s_waitcnt vmcnt(0)")
    a(f"s_branch {name}_gdone")
    a.label(f"{name}_poll")
    a(f"s_mul_i32 s{s_t0}, s{s_step}, {RC*10240}")
    a(f"s_add_u32 s{S_TB}, s{S_MBS}, s{s_t0}")
    a(f"s_addc_u32 s{S_TB+1}, s{S_MBS+1}, 0")
    a(f"s_mov_b32 s{s_spin}, 0")
    a(f"v_mov_b32 v{F+8}, 0")
    a(f"v_mov_b32 v{F+9}, 0")
    a(f"v_mov_b32 v{F+10}, 0")
    a(f"v_mov_b32 v{F+11}, 0")
    a.label(f"{name}_poll_l")
    a(f"global_load_dwordx4 {vr(F, 4)}, v{v_g0}, s[{S_TB}:{S_TB+1}] sc1")
    a(f"global_load_dwordx4 {vr(F+4, 4)}, v{v_g1}, s[{S_TB}:{S_TB+1}] sc1")
    a(f"s_cmp_ge_u32 s{s_w}, 2")
    a(f"s_cbranch_scc1 {name}_poll_b")
    a(f"global_load_dwordx4 {vr(F+8, 4)}, v{v_g2}, s[{S_TB}:{S_TB+1}] sc1")
    a.label(f"{name}_poll_b")
    a(f"s_add_u32 s{s_spin}, s{s_spin}, 1")
    a("s_waitcnt vmcnt(0)")
    a(f"v_max3_u32 v{v_t}, v{F}, v{F+1}, v{F+2}")
    a(f"v_max3_u32 v{v_t2}, v{F+3}, v{F+4}, v{F+5}")
    a(f"v_max3_u32 v{v_t}, v{F+6}, v{F+7}, v{v_t}")
    a(f"v_max3_u32 v{v_t2}, v{F+8}, v{F+9}, v{v_t2}")
    a(f"v_max3_u32 v{v_t}, v{F+10}, v{F+11}, v{v_t}")
    a(f"v_max_u32 v{v_t}, v{v_t}, v{v_t2}")
    a(f"v_cmp_eq_u32 vcc, -1, v{v_t}")
    a(f"s_cmp_ge_u32 s{s_spin}, {SPIN_MAX}")
    a(f"s_cbranch_scc1 {name}_gdone")
    a(f"s_cbranch_vccnz {name}_poll_l")
    a.label(f"{name}_gdone")
    stamp(1)
    a(f"ds_write_b128 v{v_w0}, {vr(F, 4)}")
    a(f"ds_write_b128 v{v_w1}, {vr(F+4, 4)}")
    a(f"s_cmp_ge_u32 s{s_w}, 2")
    a(f"s_cbranch_scc1 {name}_gw")
    a(f"ds_write_b128 v{v_w2}, {vr(F+8, 4)}")
    a.label(f"{name}_gw")
    a("s_waitcnt lgkmcnt(0)")
    a("s_barrier")
    stamp(2)
    Q0, Q1, K0, K1, VV = v_acc, v_acc + 4, v_acc + 8, v_acc + 12, v_acc + 16
    def qkv(kh):
        for ks in range(4):
            a(f"ds_read_b128 {vr(F + 4*ks, 4)}, v{v_fr} offset:{ks*64}")
        for ks in range(20):
            fb = F + 4 * (ks % 4)
            outstanding = min(3, 19 - ks)
            a(f"s_waitcnt lgkmcnt({outstanding})")
            c = lambda r: "0" if ks == 0 else vr(r, 4)
            a(f"v_mfma_f32_16x16x32_bf16 {vr(Q0,4)}, {wq(0,ks)}, {vr(fb,4)}, {c(Q0)}")
            a(f"v_mfma_f32_16x16x32_bf16 {vr(Q1,4)}, {wq(1,ks)}, {vr(fb,4)}, {c(Q1)}")
            a(f"v_mfma_f32_16x16x32_bf16 {vr(K0,4)}, {wk(0,ks)}, {vr(fb,4)}, {c(K0)}")
            a(f"v_mfma_f32_16x16x32_bf16 {vr(K1,4)}, {wk(1,ks)}, {vr(fb,4)}, {c(K1)}")
            if ks // 10 == kh:
                i = ks % 10
                a(f"v_mfma_f32_16x16x32_bf16 {vr(VV,4)}, {vr(fb,4)}, {wv(i)}, {'0' if i == 0 else vr(VV,4)}")
            if ks + 4 < 20:
                a(f"ds_read_b128 {vr(fb, 4)}, v{v_fr} offset:{(ks+4)*64}")
    a(f"s_cmp_ge_u32 s{s_w}, 2")
    a(f"s_cbranch_scc1 {name}_qkv1")
    qkv(0)
    a(f"s_branch {name}_qkvd")
    a.label(f"{name}_qkv1")
    qkv(1)
    a.label(f"{name}_qkvd")
    a("s_nop 7")
    a("s_nop 1")
    stamp(3)
    a(f"v_cvt_pk_bf16_f32 v{v_qf}, v{Q0}, v{Q0+1}")
    a(f"v_cvt_pk_bf16_f32 v{v_qf+1}, v{Q0+2}, v{Q0+3}")
    a(f"v_cvt_pk_bf16_f32 v{v_qf+2}, v{Q1}, v{Q1+1}")
    a(f"v_cvt_pk_bf16_f32 v{v_qf+3}, v{Q1+2}, v{Q1+3}")
    a(f"v_cvt_pk_bf16_f32 v{v_kf}, v{K0}, v{K0+1}")
    a(f"v_cvt_pk_bf16_f32 v{v_kf+1}, v{K0+2}, v{K0+3}")
    a(f"v_cvt_pk_bf16_f32 v{v_kf+2}, v{K1}, v{K1+1}")
    a(f"v_cvt_pk_bf16_f32 v{v_kf+3}, v{K1+2}, v{K1+3}")
    a("s_waitcnt vmcnt(0)")
    a(f"v_mfma_f32_16x16x32_bf16 {vr(v_s+4,4)}, {vr(v_ktk,4)}, {vr(v_qf,4)}, 0")
    a(f"v_mfma_f32_16x16x32_bf16 {vr(v_s+8,4)}, {vr(v_ktk+4,4)}, {vr(v_qf,4)}, 0")
    a(f"v_mfma_f32_16x16x32_bf16 {vr(v_s,4)}, {vr(v_kf,4)}, {vr(v_qf,4)}, 0")
    a(f"s_mov_b64 exec, s[{S_MG2}:{S_MG2+1}]")
    a(f"ds_write_b128 v{v_vpw}, {vr(VV,4)}")
    a(f"s_mov_b64 exec, s[{S_MN8}:{S_MN8+1}]")
    a(f"s_cmp_lg_u32 s{s_w}, s{s_j}")
    a(f"s_cbranch_scc1 {name}_nok")
    a(f"s_lshl_b32 s{s_t0}, s{s_step}, 16")
    a(f"s_add_u32 s{S_TB}, s{S_KM}, s{s_t0}")
    a(f"s_addc_u32 s{S_TB+1}, s{S_KM+1}, 0")
    a(f"global_store_dwordx2 v{v_km}, {vr(v_kf,2)}, s[{S_TB}:{S_TB+1}]")
    a(f"global_store_dwordx2 v{v_km}, {vr(v_kf+2,2)}, s[{S_TB}:{S_TB+1}] offset:32")
    a.label(f"{name}_nok")
    a("s_nop 7")
    a(f"ds_write_b128 v{v_spw}, {vr(v_s+4,4)} offset:64")
    a(f"ds_write_b128 v{v_spw}, {vr(v_s+8,4)} offset:128")
    a(f"ds_write_b128 v{v_spw}, {vr(v_s,4)}")
    a("s_mov_b64 exec, -1")
    a("s_waitcnt lgkmcnt(0)")
    a("s_barrier")
    stamp(4)
    B = v_big
    for tv in range(2):
        for kh in range(2):
            a(f"ds_read_b128 {vr(F + (tv*2+kh)*4, 4)}, v{v_vpr} offset:{(kh*2+tv)*512}")
    for wv_ in range(4):
        for t in range(3):
            dst = v_s + 4 * t if wv_ == 0 else v_stmp + ((wv_ - 1) * 3 + t) * 4
            a(f"ds_read_b128 {vr(dst, 4)}, v{v_spr} offset:{wv_*8*SPSTRIDE + t*64}")
    a("s_waitcnt lgkmcnt(12)")
    for tv in range(2):
        for r in range(4):
            a(f"v_add_f32 v{F + tv*8 + r}, v{F + tv*8 + r}, v{F + tv*8 + 4 + r}")
        a(f"v_cvt_pk_bf16_f32 v{v_vf + 2*tv}, v{F + tv*8}, v{F + tv*8 + 1}")
        a(f"v_cvt_pk_bf16_f32 v{v_vf + 2*tv + 1}, v{F + tv*8 + 2}, v{F + tv*8 + 3}")
    a(f"s_cmp_lg_u32 s{s_w}, 0")
    a(f"s_cbranch_scc1 {name}_nov")
    a(f"s_lshl_b32 s{s_t0}, s{s_step}, 16")
    a(f"s_add_u32 s{S_TB}, s{S_VM}, s{s_t0}")
    a(f"s_addc_u32 s{S_TB+1}, s{S_VM+1}, 0")
    a(f"s_mov_b64 exec, s[{S_MG2}:{S_MG2+1}]")
    a(f"global_store_dwordx2 v{v_vm}, {vr(v_vf,2)}, s[{S_TB}:{S_TB+1}]")
    a(f"global_store_dwordx2 v{v_vm}, {vr(v_vf+2,2)}, s[{S_TB}:{S_TB+1}] offset:256")
    a("s_mov_b64 exec, -1")
    a.label(f"{name}_nov")
    a(f"s_cmp_ge_u32 s{s_step}, {nsteps-1}")
    a(f"s_cbranch_scc1 {name}_fin")
    a("s_waitcnt lgkmcnt(0)")
    T = v_stmp
    for i in range(12):
        a(f"v_add_f32 v{T+i}, v{T+i}, v{T+12+i}")
        a(f"v_add_f32 v{v_s+i}, v{v_s+i}, v{T+24+i}")
    for i in range(12):
        a(f"v_add_f32 v{v_s+i}, v{v_s+i}, v{T+i}")
    m = v_t; m2 = v_t2
    a(f"v_max3_f32 v{m}, v{v_s}, v{v_s+1}, v{v_s+2}")
    a(f"v_max3_f32 v{m2}, v{v_s+3}, v{v_s+4}, v{v_s+5}")
    a(f"v_max3_f32 v{m}, v{v_s+6}, v{v_s+7}, v{m}")
    a(f"v_max3_f32 v{m2}, v{v_s+8}, v{v_s+9}, v{m2}")
    a(f"v_max3_f32 v{m}, v{v_s+10}, v{v_s+11}, v{m}")
    a(f"v_max_f32 v{m}, v{m}, v{m2}")
    a(f"v_mov_b32 v{m2}, v{m}")
    a("s_nop 1")
    a(f"v_permlane16_swap_b32 v{m}, v{m2}")
    a(f"v_max_f32 v{m}, v{m}, v{m2}")
    a(f"v_mov_b32 v{m2}, v{m}")
    a("s_nop 1")
    a(f"v_permlane32_swap_b32 v{m}, v{m2}")
    a(f"v_max_f32 v{m}, v{m}, v{m2}")
    a(f"v_mul_f32 v{m}, s{s_c}, v{m}")
    for i in range(12):
        a(f"v_fma_f32 v{v_s+i}, v{v_s+i}, s{s_c}, -v{m}")
    for i in range(12):
        a(f"v_exp_f32 v{v_s+i}, v{v_s+i}")
    a("s_nop 0")
    for i in range(4):
        a(f"v_cndmask_b32 v{v_s+i}, 0, v{v_s+i}, s[{S_MG2}:{S_MG2+1}]")
    a(f"v_add_f32 v{m}, v{v_s}, v{v_s+1}")
    a(f"v_add_f32 v{m2}, v{v_s+2}, v{v_s+3}")
    for i in range(4, 12, 2):
        a(f"v_add_f32 v{m}, v{m}, v{v_s+i}")
        a(f"v_add_f32 v{m2}, v{m2}, v{v_s+i+1}")
    a(f"v_add_f32 v{m}, v{m}, v{m2}")
    a(f"v_mov_b32 v{m2}, v{m}")
    a("s_nop 1")
    a(f"v_permlane16_swap_b32 v{m}, v{m2}")
    a(f"v_add_f32 v{m}, v{m}, v{m2}")
    a(f"v_mov_b32 v{m2}, v{m}")
    a("s_nop 1")
    a(f"v_permlane32_swap_b32 v{m}, v{m2}")
    a(f"v_add_f32 v{m}, v{m}, v{m2}")
    a(f"v_rcp_f32 v{m}, v{m}")
    a("s_nop 0")
    for i in range(12):
        a(f"v_mul_f32 v{v_s+i}, v{v_s+i}, v{m}")
    for i in range(6):
        a(f"v_cvt_pk_bf16_f32 v{v_p+i}, v{v_s+2*i}, v{v_s+2*i+1}")
    a("s_nop 1")
    stamp(5)
    for tv in range(2):
        O = Q0 + 4 * tv
        a(f"v_mfma_f32_16x16x16_bf16 {vr(O,4)}, {vr(v_vf+2*tv,2)}, {vr(v_p,2)}, 0")
    for t in (1, 2):
        for tv in range(2):
            O = Q0 + 4 * tv
            a(f"v_mfma_f32_16x16x16_bf16 {vr(O,4)}, {vr(v_vtk + tv*4 + (t-1)*2,2)}, {vr(v_p+2*t,2)}, {vr(O,4)}")
    a("s_nop 7")
    a("s_nop 1")
    a(f"v_cvt_pk_bf16_f32 v{v_qf}, v{Q0}, v{Q0+1}")
    a(f"v_cvt_pk_bf16_f32 v{v_qf+1}, v{Q0+2}, v{Q0+3}")
    a(f"v_cvt_pk_bf16_f32 v{v_qf+2}, v{Q1}, v{Q1+1}")
    a(f"v_cvt_pk_bf16_f32 v{v_qf+3}, v{Q1+2}, v{Q1+3}")
    a(f"s_and_b32 s{s_t0}, s{s_step}, {RING-1}")
    a(f"s_mul_i32 s{s_t0}, s{s_t0}, {80*32768}")
    a(f"s_add_u32 s{S_PB}, s{S_PT}, s{s_t0}")
    a(f"s_addc_u32 s{S_PB+1}, s{S_PT+1}, 0")
    for t in range(10):
        a(f"v_mfma_f32_16x16x32_bf16 {vr(B+4*t,4)}, {wo(t)}, {vr(v_qf,4)}, 0")
    a(f"s_mov_b64 exec, s[{S_MN8}:{S_MN8+1}]")
    for t in range(10):
        if t == 0:
            a("s_nop 0")
            a(f"global_store_dwordx4 v{v_part}, {vr(B,4)}, s[{S_PB}:{S_PB+1}] sc1")
        else:
            tr = v_t if t % 2 else v_t2
            a(f"v_add_u32 v{tr}, {t*65536}, v{v_part}")
            a(f"global_store_dwordx4 v{tr}, {vr(B+4*t,4)}, s[{S_PB}:{S_PB+1}] sc1")
    a("s_mov_b64 exec, -1")
    stamp(6)
    a("s_cmp_ge_u32 s2, 80")
    a(f"s_cbranch_scc1 {name}_next")
    a(f"s_lshl_b32 s{s_t0}, s2, 15")
    a(f"s_add_u32 s{S_TB}, s{S_PB}, s{s_t0}")
    a(f"s_addc_u32 s{S_TB+1}, s{S_PB+1}, 0")
    a(f"s_add_u32 s{S_TB2}, s{S_TB}, 16384")
    a(f"s_addc_u32 s{S_TB2+1}, s{S_TB+1}, 0")
    a(f"s_mov_b32 s{s_spin}, 0")
    a(f"v_add_u32 v{v_t3}, 8192+4096, v{v_g0}")
    a.label(f"{name}_rpoll")
    offs = [v_g0, v_g1, v_g2, v_t3]
    for i in range(8):
        sb = S_TB if i < 4 else S_TB2
        a(f"global_load_dwordx4 {vr(B+4*i,4)}, v{offs[i%4]}, s[{sb}:{sb+1}] sc1")
    a(f"s_add_u32 s{s_spin}, s{s_spin}, 1")
    a("s_waitcnt vmcnt(0)")
    a(f"v_max3_u32 v{v_t}, v{B}, v{B+1}, v{B+2}")
    a(f"v_max3_u32 v{v_t2}, v{B+3}, v{B+4}, v{B+5}")
    for i in range(6, 30, 4):
        a(f"v_max3_u32 v{v_t}, v{B+i}, v{B+i+1}, v{v_t}")
        a(f"v_max3_u32 v{v_t2}, v{B+i+2}, v{B+i+3}, v{v_t2}")
    a(f"v_max3_u32 v{v_t}, v{B+30}, v{B+31}, v{v_t}")
    a(f"v_max_u32 v{v_t}, v{v_t}, v{v_t2}")
    a(f"v_cmp_eq_u32 vcc, -1, v{v_t}")
    a(f"s_cmp_ge_u32 s{s_spin}, {SPIN_MAX}")
    a(f"s_cbranch_scc1 {name}_rdone")
    a(f"s_cbranch_vccnz {name}_rpoll")
    a.label(f"{name}_rdone")
    stamp(7)
    for lvl in (16, 8, 4):
        for i in range(lvl):
            a(f"v_add_f32 v{B+i}, v{B+i}, v{B+lvl+i}")
    a(f"ds_write_b128 v{v_redw}, {vr(B,4)}")
    a("s_waitcnt lgkmcnt(0)")
    a("s_barrier")
    a(f"s_cmp_lg_u32 s{s_w}, 0")
    a(f"s_cbranch_scc1 {name}_rclr")
    for i in range(16):
        a(f"ds_read_b64 {vr(B+2*i,2)}, v{v_redr} offset:{i*256}")
    a(f"s_add_u32 s{s_t0}, s{s_step}, 1")
    a(f"s_mul_i32 s{s_t0}, s{s_t0}, {RC*10240}")
    a(f"s_add_u32 s{S_TB2}, s{S_MB}, s{s_t0}")
    a(f"s_addc_u32 s{S_TB2+1}, s{S_MB+1}, 0")
    a("s_waitcnt lgkmcnt(0)")
    for lvl in (16, 8, 4, 2):
        for i in range(lvl):
            a(f"v_add_f32 v{B+i}, v{B+i}, v{B+lvl+i}")
    a(f"v_cvt_pk_bf16_f32 v{B}, v{B}, v{B+1}")
    a("s_mov_b32 exec_lo, -1")
    a("s_mov_b32 exec_hi, 0")
    for c in range(RC):
        if c * 10240 < 4096:
            a(f"global_store_dword v{v_pub}, v{B}, s[{S_TB2}:{S_TB2+1}] offset:{c*10240} sc1")
        else:
            a(f"v_add_u32 v{v_t}, {c*10240}, v{v_pub}")
            a(f"global_store_dword v{v_t}, v{B}, s[{S_TB2}:{S_TB2+1}] sc1")
    a("s_mov_b64 exec, -1")
    a.label(f"{name}_rclr")
    stamp(8)
    a(f"s_add_u32 s{S_TB2}, s{S_TB}, 16384")
    a(f"s_addc_u32 s{S_TB2+1}, s{S_TB+1}, 0")
    for i in range(4):
        a(f"v_mov_b32 v{B+36+i}, -1")
    for i in range(8):
        sb = S_TB if i < 4 else S_TB2
        a(f"global_store_dwordx4 v{offs[i%4]}, {vr(B+36,4)}, s[{sb}:{sb+1}] sc1")
    a.label(f"{name}_next")
    if prof:
        stamp(9)
        a(f"s_cmp_lg_u32 s{s_w}, 0")
        a(f"s_cbranch_scc1 {name}_nost")
        a(f"s_lshl_b32 s{s_t0}, s2, 6")
        a(f"s_add_u32 s{s_t0}, s{s_t0}, s{s_step}")
        a(f"s_lshl_b32 s{s_t0}, s{s_t0}, 7")
        a(f"s_add_u32 s{s_t0}, s{s_t0}, {120*MB}")
        a(f"s_add_u32 s{S_TB}, s{S_WS}, s{s_t0}")
        a(f"s_addc_u32 s{S_TB+1}, s{S_WS+1}, 0")
        a(f"v_mov_b32 v{v_t3}, 0")
        for i in range(NST):
            a(f"v_mov_b32 v{v_t}, s{64+2*i}")
            a(f"global_store_dword v{v_t3}, v{v_t}, s[{S_TB}:{S_TB+1}] offset:{i*4}")
            a("s_nop 2")
        a.label(f"{name}_nost")
    a(f"s_add_u32 s{s_step}, s{s_step}, 1")
    a(f"s_branch {name}_loop")
    a.label(f"{name}_fin")
    a("s_waitcnt vmcnt(0) lgkmcnt(0)")
    a.label(f"{name}_end")
    a("s_endpgm")
    return kernel_desc(name, 512, 96, 256)

if __name__ == "__main__":
    a = Asm()
    a.raw(f"; @launch kernel=rec_kernel grid=(128,1,1) block=(256,1,1) lds={REC_LDS}")
    a.raw('.amdgcn_target "amdgcn-amd-amdhsa--gfx950"')
    a.raw(".text")
    import sys
    d = gen_rec(a, "rec_kernel", prof=len(sys.argv) > 1)
    a.raw('.section .rodata,"a"')
    a.raw(".p2align 6")
    a.raw(d)
    open("rec_test.s", "w").write(a.text())
```

```python
from gen_common import *
from gen_rec import gen_rec, REC_LDS
from gen_gemm1 import gen_gemm1, G1_LDS
from gen_attn import gen_attn
from gen_gemm2 import gen_gemm2, gen_combine, G2_LDS
import sys
out = sys.argv[1] if len(sys.argv) > 1 else "gated_mix__memory_aug_recurrent_mem_tr__glu_gated_geglu__prompt.s"
a = Asm()
a.raw(f"; @launch kernel=gemm1_kernel grid=(256,1,1) block=(256,1,1) lds={G1_LDS}")
a.raw(f"; @launch kernel=rec_kernel grid=(128,1,1) block=(256,1,1) lds={REC_LDS}")
a.raw(f"; @launch kernel=attn_kernel grid=(512,1,1) block=(256,1,1) lds=0")
a.raw(f"; @launch kernel=gemm2_kernel grid=(240,1,1) block=(256,1,1) lds={G2_LDS}")
a.raw(f"; @launch kernel=comb_kernel grid=(512,1,1) block=(256,1,1) lds=0")
a.raw('.amdgcn_target "amdgcn-amd-amdhsa--gfx950"')
a.raw(".text")
ds = [gen_gemm1(a, "gemm1_kernel"), gen_rec(a, "rec_kernel"), gen_attn(a, "attn_kernel"), gen_gemm2(a, "gemm2_kernel"), gen_combine(a, "comb_kernel")]
a.raw('.section .rodata,"a"')
for d in ds:
    a.raw(".p2align 6")
    a.raw(d)
open(out, "w").write(a.text())
```

```python
from gen_common import *
from m_sync import *
WS_P2 = 104 * MB
G2_LDS = 4 * 32768
NJOBS2 = 240

def gen_down_body(a, name, nwg=128):
    V = Alloc(1, 256)
    v_n = V.get("n"); v_g = V.get("g"); v_l = V.get("l")
    v_aoff = V.get("aoff"); v_b0 = V.get("b0"); v_b1 = V.get("b1")
    v_ard = V.get("ard"); v_brd = V.get("brd"); v_ar = V.get("ar"); v_br = V.get("br")
    v_t = V.get("t"); v_t2 = V.get("t2"); v_t3 = V.get("t3"); v_t4 = V.get("t4")
    v_so = V.get("so")
    v_fa = V.get("fa", 32, 4); v_fb = V.get("fb", 32, 4)
    v_acc = V.get("acc", 64, 4)
    v_e = V.get("e", 16, 4)
    s_w, s_wm, s_wn = 3, 4, 5
    S_WO, S_WD, S_WS = 6, 8, 10
    SRD_A, SRD_B = 20, 24
    s_jobl, s_kl, s_slotl, s_nkl = 32, 33, 34, 35
    s_jobc, s_kc, s_slotc, s_nkc = 36, 37, 38, 39
    s_aso, s_bso, s_ars8, s_t0, s_t1, s_t2 = 40, 41, 42, 43, 44, 45
    S_OB = 50
    s_ldone = 52
    a("s_load_dwordx2 s[6:7], s[0:1], 40")
    a("s_load_dwordx2 s[8:9], s[0:1], 80")
    a("s_load_dwordx2 s[10:11], s[0:1], 112")
    a(f"v_lshrrev_b32 v{v_t}, 6, v0")
    a(f"v_and_b32 v{v_l}, 63, v0")
    a(f"v_readfirstlane_b32 s{s_w}, v{v_t}")
    a(f"v_and_b32 v{v_n}, 15, v0")
    a(f"v_lshrrev_b32 v{v_g}, 4, v{v_l}")
    a(f"s_lshr_b32 s{s_wm}, s{s_w}, 1")
    a(f"s_and_b32 s{s_wn}, s{s_w}, 1")
    a("s_waitcnt lgkmcnt(0)")
    a(f"s_mov_b32 s{SRD_A+3}, 0x00020000")
    a(f"s_mov_b32 s{SRD_B+3}, 0x00020000")
    a(f"v_and_b32 v{v_t}, 7, v{v_n}")
    a(f"v_xor_b32 v{v_t}, v{v_t}, v{v_g}")
    a(f"v_lshlrev_b32 v{v_t}, 4, v{v_t}")
    a(f"v_lshl_add_u32 v{v_ard}, v{v_n}, 7, v{v_t}")
    a(f"s_lshl_b32 s{s_t0}, s{s_wm}, 13")
    a(f"v_add_u32 v{v_ard}, s{s_t0}, v{v_ard}")
    a(f"v_lshrrev_b32 v{v_t}, 2, v{v_n}")
    a(f"v_and_b32 v{v_t2}, 1, v{v_g}")
    a(f"v_lshl_add_u32 v{v_t2}, v{v_t2}, 2, v{v_t}")
    a(f"v_lshl_add_u32 v{v_t}, v{v_g}, 3, v{v_t}")
    a(f"v_lshlrev_b32 v{v_t}, 8, v{v_t}")
    a(f"v_and_b32 v{v_t3}, 3, v{v_l}")
    a(f"v_lshl_add_u32 v{v_t}, v{v_t3}, 3, v{v_t}")
    a(f"s_lshl_b32 s{s_t0}, s{s_wn}, 2")
    a(f"v_xor_b32 v{v_t2}, s{s_t0}, v{v_t2}")
    a(f"v_lshl_add_u32 v{v_brd}, v{v_t2}, 5, v{v_t}")
    a(f"v_add_u32 v{v_brd}, 16384, v{v_brd}")
    for s_, val in ((s_kl, 0), (s_kc, 0), (s_slotl, 0), (s_slotc, 0), (s_ldone, 0)):
        a(f"s_mov_b32 s{s_}, {val}")
    a(f"s_add_u32 s{s_jobl}, s{S_WID}, 160")
    a(f"s_mov_b32 s{s_jobc}, s{s_jobl}")
    a(f"s_and_b32 s{s_t0}, s{S_WID}, 15")
    a(f"s_lshl_b32 s{s_t0}, s{s_t0}, 2")
    poll_dbg(a, name + "_hw", s_t0, 16, 27, v_t, v_t2, s_t1, s_t2, s_w)

    def part_of(sj, st):
        a(f"s_cmp_ge_u32 s{sj}, 80")
        a(f"s_cselect_b32 s{st}, 1, 0")
        a(f"s_cmp_ge_u32 s{sj}, 160")
        a(f"s_cselect_b32 s{st}, 2, s{st}")

    def load_stage():
        skip = a.newlabel(f"{name}_ls_skip"); nodec = a.newlabel(f"{name}_ls_nodec")
        pb = a.newlabel(f"{name}_ls_pb"); dd = a.newlabel(f"{name}_ls_dd")
        a(f"s_cmp_lg_u32 s{s_ldone}, 0")
        a(f"s_cbranch_scc1 {skip}")
        a(f"s_cmp_lg_u32 s{s_kl}, 0")
        a(f"s_cbranch_scc1 {nodec}")
        part_of(s_jobl, s_t2)
        a(f"s_mul_i32 s{s_t0}, s{s_t2}, 80")
        a(f"s_sub_u32 s{s_t0}, s{s_jobl}, s{s_t0}")
        a(f"s_lshr_b32 s{s_t1}, s{s_t0}, 4")
        a(f"s_and_b32 s{s_t0}, s{s_t0}, 15")
        a(f"s_lshl_b32 s{s_t0}, s{s_t0}, 2")
        a(f"s_add_u32 s{s_t0}, s{s_t0}, s{s_w}")
        a(f"s_lshl_b32 s{s_t0}, s{s_t0}, 5")
        a(f"v_lshlrev_b32 v{v_t}, 1, v{v_g}")
        a(f"v_xor_b32 v{v_t}, v{v_t}, v{v_n}")
        a(f"v_mul_u32_u24 v{v_b0}, 1280, v{v_g}")
        a(f"s_lshl_b32 s{s_t1}, s{s_t1}, 8")
        a(f"v_add_u32 v{v_b0}, s{s_t1}, v{v_b0}")
        a(f"v_lshlrev_b32 v{v_t}, 4, v{v_t}")
        a(f"v_xor_b32 v{v_t2}, 128, v{v_t}")
        a(f"v_add_u32 v{v_b1}, v{v_b0}, v{v_t2}")
        a(f"v_add_u32 v{v_b0}, v{v_b0}, v{v_t}")
        a(f"v_lshrrev_b32 v{v_t}, 3, v{v_l}")
        a(f"v_and_b32 v{v_t2}, 7, v{v_l}")
        a(f"v_xor_b32 v{v_t2}, v{v_t2}, v{v_t}")
        a(f"v_lshlrev_b32 v{v_t2}, 4, v{v_t2}")
        a(f"s_cmp_eq_u32 s{s_t2}, 2")
        a(f"s_cbranch_scc1 {pb}")
        a(f"s_add_u32 s{SRD_A}, s{S_WS}, {WS_O}")
        a(f"s_addc_u32 s{SRD_A+1}, s{S_WS+1}, 0")
        a(f"s_and_b32 s{SRD_A+1}, s{SRD_A+1}, 0xffff")
        a(f"s_mov_b32 s{SRD_A+2}, {2048*8192}")
        a(f"s_mov_b32 s{SRD_B}, s{S_WO}")
        a(f"s_and_b32 s{SRD_B+1}, s{S_WO+1}, 0xffff")
        a(f"s_mov_b32 s{SRD_B+2}, {4096*1280}")
        a(f"s_lshl_b32 s{s_aso}, s{s_t0}, 13")
        a(f"s_lshl_b32 s{s_t1}, s{s_t2}, 12")
        a(f"s_add_u32 s{s_aso}, s{s_aso}, s{s_t1}")
        a(f"s_mov_b32 s{s_ars8}, {8*8192}")
        a(f"s_mul_i32 s{s_bso}, s{s_t2}, {2048*1280}")
        a(f"s_mov_b32 s{s_nkl}, 32")
        a(f"v_lshl_add_u32 v{v_aoff}, v{v_t}, 13, v{v_t2}")
        a(f"s_branch {dd}")
        a.label(pb)
        a(f"s_add_u32 s{SRD_A}, s{S_WS}, {WS_H}")
        a(f"s_addc_u32 s{SRD_A+1}, s{S_WS+1}, 0")
        a(f"s_and_b32 s{SRD_A+1}, s{SRD_A+1}, 0xffff")
        a(f"s_mov_b32 s{SRD_A+2}, {2048*3456}")
        a(f"s_mov_b32 s{SRD_B}, s{S_WD}")
        a(f"s_and_b32 s{SRD_B+1}, s{S_WD+1}, 0xffff")
        a(f"s_mov_b32 s{SRD_B+2}, {1728*1280}")
        a(f"s_mul_i32 s{s_aso}, s{s_t0}, 3456")
        a(f"s_mov_b32 s{s_ars8}, {8*3456}")
        a(f"s_mov_b32 s{s_bso}, 0")
        a(f"s_mov_b32 s{s_nkl}, 27")
        a(f"v_mul_u32_u24 v{v_aoff}, 3456, v{v_t}")
        a(f"v_add_u32 v{v_aoff}, v{v_aoff}, v{v_t2}")
        a.label(dd)
        a(f"s_mul_i32 s{s_t0}, s{s_w}, {16*1280}")
        a(f"s_add_u32 s{s_bso}, s{s_bso}, s{s_t0}")
        a.label(nodec)
        a(f"s_lshl_b32 s{s_t0}, s{s_w}, 12")
        a(f"s_add_u32 s{s_t0}, s{s_t0}, s{s_slotl}")
        a(f"s_mov_b32 s{s_t1}, s{s_aso}")
        for i in range(4):
            a(f"s_add_u32 m0, s{s_t0}, {i*1024}")
            if i: a(f"s_add_u32 s{s_t1}, s{s_t1}, s{s_ars8}")
            else: a("s_nop 0")
            a(f"buffer_load_dwordx4 v{v_aoff}, s[{SRD_A}:{SRD_A+3}], s{s_t1} offen sc1 lds")
        a(f"s_add_u32 s{s_aso}, s{s_aso}, 128")
        a(f"s_add_u32 s{s_t0}, s{s_t0}, 16384")
        for i in range(4):
            a(f"s_add_u32 m0, s{s_t0}, {i*1024}")
            a(f"s_add_u32 s{s_t1}, s{s_bso}, {i*4*1280}")
            a(f"buffer_load_dwordx4 v{v_b0 if i < 2 else v_b1}, s[{SRD_B}:{SRD_B+3}], s{s_t1} offen lds")
        a(f"s_add_u32 s{s_bso}, s{s_bso}, {64*1280}")
        a(f"s_add_u32 s{s_slotl}, s{s_slotl}, 32768")
        a(f"s_and_b32 s{s_slotl}, s{s_slotl}, {4*32768-1}")
        a(f"s_add_u32 s{s_kl}, s{s_kl}, 1")
        a(f"s_cmp_lt_u32 s{s_kl}, s{s_nkl}")
        a(f"s_cbranch_scc1 {skip}")
        a(f"s_mov_b32 s{s_kl}, 0")
        a(f"s_add_u32 s{s_jobl}, s{s_jobl}, {nwg}")
        a(f"s_cmp_ge_u32 s{s_jobl}, {NJOBS2}")
        a(f"s_cselect_b32 s{s_ldone}, 1, 0")
        a.label(skip)

    def read_frags(st, ks):
        for b in range(4):
            areg = v_ar if ks == 0 else v_t4
            a(f"ds_read_b128 {vr(v_fa + st*16 + 4*b, 4)}, v{areg} offset:{b*2048}")
        for t in range(4):
            a(f"ds_read_b64_tr_b16 {vr(v_fb + st*16 + 4*t, 2)}, v{v_e + 8 + t} offset:{ks*8192}")
            a(f"ds_read_b64_tr_b16 {vr(v_fb + st*16 + 4*t + 2, 2)}, v{v_e + 8 + t} offset:{ks*8192 + 1024}")
    def set_addr():
        a(f"v_add_u32 v{v_ar}, s{s_slotc}, v{v_ard}")
        a(f"v_xor_b32 v{v_t4}, 64, v{v_ar}")
        a(f"v_add_u32 v{v_br}, s{s_slotc}, v{v_brd}")
        for t in range(4):
            a(f"v_xor_b32 v{v_e + 8 + t}, {t*32}, v{v_br}")
    def mfmas(st, first):
        for b in range(4):
            for t in range(4):
                acc = vr(v_acc + (t*4 + b)*4, 4)
                A = vr(v_fa + st*16 + 4*b, 4); Bf = vr(v_fb + st*16 + 4*t, 4)
                a(f"v_mfma_f32_16x16x32_bf16 {acc}, {Bf}, {A}, {'0' if first else acc}")
    def nk_of():
        a(f"s_cmp_ge_u32 s{s_jobc}, 160")
        a(f"s_cselect_b32 s{s_nkc}, 27, 32")
    for i in range(4):
        load_stage()
    nk_of()
    a("s_waitcnt vmcnt(24)")
    a("s_barrier")
    set_addr()
    read_frags(0, 0)
    a.label(f"{name}_loop")
    read_frags(1, 1)
    a("s_waitcnt lgkmcnt(12)")
    a(f"s_cmp_eq_u32 s{s_kc}, 0")
    a(f"s_cbranch_scc1 {name}_f1")
    mfmas(0, False)
    a(f"s_branch {name}_f2")
    a.label(f"{name}_f1")
    mfmas(0, True)
    a.label(f"{name}_f2")
    a(f"s_cmp_lg_u32 s{s_ldone}, 0")
    a(f"s_cbranch_scc1 {name}_w0")
    a("s_waitcnt vmcnt(16) lgkmcnt(0)")
    a(f"s_branch {name}_w1")
    a.label(f"{name}_w0")
    a("s_waitcnt vmcnt(0) lgkmcnt(0)")
    a.label(f"{name}_w1")
    a("s_barrier")
    load_stage()
    a(f"s_add_u32 s{s_slotc}, s{s_slotc}, 32768")
    a(f"s_and_b32 s{s_slotc}, s{s_slotc}, {4*32768-1}")
    set_addr()
    read_frags(0, 0)
    mfmas(1, False)
    a(f"s_add_u32 s{s_kc}, s{s_kc}, 1")
    a(f"s_cmp_lt_u32 s{s_kc}, s{s_nkc}")
    a(f"s_cbranch_scc1 {name}_loop")
    a("s_nop 7")
    a(f"s_sub_u32 s{s_t0}, s{s_jobc}, 160")
    a(f"s_lshr_b32 s{s_t1}, s{s_t0}, 4")
    a(f"s_and_b32 s{s_t0}, s{s_t0}, 15")
    a(f"s_lshl_b32 s{s_t2}, s{s_t0}, 1")
    a(f"s_add_u32 s{s_t2}, s{s_t2}, s{s_wm}")
    a(f"s_mul_i32 s{s_t2}, s{s_t2}, {64*1280}")
    a(f"s_lshl_b32 s{s_t1}, s{s_t1}, 1")
    a(f"s_add_u32 s{s_t1}, s{s_t1}, s{s_wn}")
    a(f"s_lshl_b32 s{s_t1}, s{s_t1}, 7")
    a(f"s_add_u32 s{s_t2}, s{s_t2}, s{s_t1}")
    a(f"s_add_u32 s{s_t2}, s{s_t2}, {WS_B}")
    a(f"s_add_u32 s{S_OB}, s{S_WS}, s{s_t2}")
    a(f"s_addc_u32 s{S_OB+1}, s{S_WS+1}, 0")
    a(f"v_mul_u32_u24 v{v_so}, 1280, v{v_n}")
    a(f"v_lshl_add_u32 v{v_so}, v{v_g}, 3, v{v_so}")
    for b in range(4):
        for t in range(4):
            ac = v_acc + (t*4 + b)*4
            e = v_e + (t % 2) * 2
            a(f"v_cvt_pk_bf16_f32 v{e}, v{ac}, v{ac+1}")
            a(f"v_cvt_pk_bf16_f32 v{e+1}, v{ac+2}, v{ac+3}")
            a(f"global_store_dwordx2 v{v_so}, {vr(e,2)}, s[{S_OB}:{S_OB+1}] offset:{t*32} sc1")
        if b < 3:
            a(f"v_add_u32 v{v_so}, {16*1280}, v{v_so}")
    a("s_waitcnt vmcnt(0) lgkmcnt(0)")
    a("s_barrier")
    a(f"s_lshl_b32 s{s_t0}, s{s_t0}, 2")
    signal_dbg(a, name + "_sg", s_t0, 1 << 24, v_e, v_e + 1, s_w)
```

```python
from gen_common import *
S_WID = 100
S_DBGW = 98
import struct
def f32bits(x):
    return struct.unpack("<I", struct.pack("<f", x))[0]

G1_LDS = 4 * 32768
NJOBS1 = 123 * 16

def gen_gemm1_body(a, name, nwg=128):
    V = Alloc(1, 256)
    v_n = V.get("n"); v_g = V.get("g"); v_l = V.get("l")
    v_aoff = V.get("aoff"); v_b0 = V.get("b0"); v_b1 = V.get("b1")
    v_ard = V.get("ard"); v_brd = V.get("brd"); v_ar = V.get("ar"); v_br = V.get("br")
    v_t = V.get("t"); v_t2 = V.get("t2"); v_t3 = V.get("t3"); v_t4 = V.get("t4")
    v_so = V.get("so")
    v_fa = V.get("fa", 32, 4)
    v_fb = V.get("fb", 32, 4)
    v_acc = V.get("acc", 64, 4)
    v_e = V.get("e", 16, 4)
    s_w, s_wm, s_wn = 3, 4, 5
    S_X, S_WQ, S_WK, S_WV, S_WG, S_WU, S_WS = 6, 8, 10, 12, 14, 16, 18
    SRD_A, SRD_B, SRD_U = 20, 24, 28
    s_jobl, s_kl, s_slotl, s_typel = 32, 33, 34, 35
    s_jobc, s_kc, s_slotc, s_typec = 36, 37, 38, 39
    s_aso, s_bso, s_rs, s_t0, s_t1, s_t2 = 40, 41, 42, 43, 44, 45
    S_MG, S_MU = 46, 48
    S_OB = 50
    s_ldone = 52
    s_c1, s_c2 = 53, 54
    s_seql, s_seqc = 55, 56
    a("s_load_dwordx2 s[6:7], s[0:1], 0")
    a("s_load_dwordx4 s[8:11], s[0:1], 16")
    a("s_load_dwordx2 s[12:13], s[0:1], 32")
    a("s_load_dwordx2 s[14:15], s[0:1], 64")
    a("s_load_dwordx2 s[16:17], s[0:1], 72")
    a("s_load_dwordx2 s[18:19], s[0:1], 112")
    a(f"v_lshrrev_b32 v{v_t}, 6, v0")
    a(f"v_and_b32 v{v_l}, 63, v0")
    a(f"v_readfirstlane_b32 s{s_w}, v{v_t}")
    a(f"v_and_b32 v{v_n}, 15, v0")
    a(f"v_lshrrev_b32 v{v_g}, 4, v{v_l}")
    a(f"s_lshr_b32 s{s_wm}, s{s_w}, 1")
    a(f"s_and_b32 s{s_wn}, s{s_w}, 1")
    a("s_waitcnt lgkmcnt(0)")
    a(f"s_mov_b32 s{SRD_A}, s{S_X}")
    a(f"s_and_b32 s{SRD_A+1}, s{S_X+1}, 0xffff")
    a(f"s_mov_b32 s{SRD_A+2}, {2048*1280}")
    a(f"s_mov_b32 s{SRD_A+3}, 0x00020000")
    a(f"s_mov_b32 s{SRD_B+3}, 0x00020000")
    a(f"s_mov_b32 s{SRD_U}, s{S_WU}")
    a(f"s_and_b32 s{SRD_U+1}, s{S_WU+1}, 0xffff")
    a(f"s_mov_b32 s{SRD_U+2}, {640*3456}")
    a(f"s_mov_b32 s{SRD_U+3}, 0x00020000")
    a(f"v_lshrrev_b32 v{v_t}, 3, v{v_l}")
    a(f"v_and_b32 v{v_t2}, 7, v{v_l}")
    a(f"v_xor_b32 v{v_t2}, v{v_t2}, v{v_t}")
    a(f"v_mul_u32_u24 v{v_aoff}, 1280, v{v_t}")
    a(f"v_lshl_add_u32 v{v_aoff}, v{v_t2}, 4, v{v_aoff}")
    a(f"v_and_b32 v{v_t}, 7, v{v_n}")
    a(f"v_xor_b32 v{v_t}, v{v_t}, v{v_g}")
    a(f"v_lshlrev_b32 v{v_t}, 4, v{v_t}")
    a(f"v_lshl_add_u32 v{v_ard}, v{v_n}, 7, v{v_t}")
    a(f"s_lshl_b32 s{s_t0}, s{s_wm}, 13")
    a(f"v_add_u32 v{v_ard}, s{s_t0}, v{v_ard}")
    a(f"v_lshrrev_b32 v{v_t}, 2, v{v_n}")
    a(f"v_and_b32 v{v_t2}, 1, v{v_g}")
    a(f"v_lshl_add_u32 v{v_t2}, v{v_t2}, 2, v{v_t}")
    a(f"v_lshl_add_u32 v{v_t}, v{v_g}, 3, v{v_t}")
    a(f"v_lshlrev_b32 v{v_t}, 8, v{v_t}")
    a(f"v_and_b32 v{v_t3}, 3, v{v_l}")
    a(f"v_lshl_add_u32 v{v_t}, v{v_t3}, 3, v{v_t}")
    a(f"s_lshl_b32 s{s_t0}, s{s_wn}, 2")
    a(f"v_xor_b32 v{v_t2}, s{s_t0}, v{v_t2}")
    a(f"v_lshl_add_u32 v{v_brd}, v{v_t2}, 5, v{v_t}")
    a(f"v_add_u32 v{v_brd}, 16384, v{v_brd}")
    a(f"v_lshrrev_b32 v{v_t}, 1, v{v_l}")
    a(f"v_xor_b32 v{v_t}, v{v_t}, v{v_g}")
    a(f"v_and_b32 v{v_t}, 1, v{v_t}")
    a(f"v_cmp_eq_u32 s[{S_MG}:{S_MG+1}], 0, v{v_t}")
    a(f"v_cmp_eq_u32 s[{S_MU}:{S_MU+1}], 1, v{v_t}")
    def map_job(seq, job):
        lq = a.newlabel(f"{name}_mq"); lg = a.newlabel(f"{name}_mg"); ld = a.newlabel(f"{name}_md")
        a(f"s_cmp_ge_u32 s{seq}, 1024")
        a(f"s_cbranch_scc1 {lq}")
        a(f"s_and_b32 s{job}, s{seq}, 63")
        a(f"s_add_u32 s{job}, s{job}, 32")
        a(f"s_lshl_b32 s{job}, s{job}, 4")
        a(f"s_lshr_b32 s{s_t0}, s{seq}, 6")
        a(f"s_add_u32 s{job}, s{job}, s{s_t0}")
        a(f"s_branch {ld}")
        a.label(lq)
        a(f"s_cmp_ge_u32 s{seq}, 1536")
        a(f"s_cbranch_scc1 {lg}")
        a(f"s_and_b32 s{job}, s{seq}, 31")
        a(f"s_lshl_b32 s{job}, s{job}, 4")
        a(f"s_sub_u32 s{s_t0}, s{seq}, 1024")
        a(f"s_lshr_b32 s{s_t0}, s{s_t0}, 5")
        a(f"s_add_u32 s{job}, s{job}, s{s_t0}")
        a(f"s_branch {ld}")
        a.label(lg)
        a(f"s_sub_u32 s{s_t0}, s{seq}, 1536")
        a(f"s_mul_i32 s{s_t1}, s{s_t0}, 2428")
        a(f"s_lshr_b32 s{s_t1}, s{s_t1}, 16")
        a(f"s_mul_i32 s{job}, s{s_t1}, 27")
        a(f"s_sub_u32 s{job}, s{s_t0}, s{job}")
        a(f"s_add_u32 s{job}, s{job}, 96")
        a(f"s_lshl_b32 s{job}, s{job}, 4")
        a(f"s_add_u32 s{job}, s{job}, s{s_t1}")
        a.label(ld)
    a(f"s_mov_b32 s{s_seql}, s{S_WID}")
    a(f"s_mov_b32 s{s_seqc}, s{S_WID}")
    map_job(s_seql, s_jobl)
    a(f"s_mov_b32 s{s_jobc}, s{s_jobl}")
    a(f"s_mov_b32 s{s_kl}, 0")
    a(f"s_mov_b32 s{s_kc}, 0")
    a(f"s_mov_b32 s{s_slotl}, 0")
    a(f"s_mov_b32 s{s_slotc}, 0")
    a(f"s_mov_b32 s{s_ldone}, 0")
    a(f"s_mov_b32 s{s_c1}, {f32bits(-2*0.7978845608028654*1.4426950408889634)}")
    a(f"s_mov_b32 s{s_c2}, {f32bits(0.044715)}")

    def type_of(sj, st):
        a(f"s_lshr_b32 s{st}, s{sj}, 9")

    def load_stage():
        skip = a.newlabel(f"{name}_ls_skip"); nodec = a.newlabel(f"{name}_ls_nodec")
        gu = a.newlabel(f"{name}_ls_gu"); dec_done = a.newlabel(f"{name}_ls_dd")
        bgu = a.newlabel(f"{name}_ls_bgu"); bdone = a.newlabel(f"{name}_ls_bd"); nowrap = a.newlabel(f"{name}_ls_nw")
        a(f"s_cmp_lg_u32 s{s_ldone}, 0")
        a(f"s_cbranch_scc1 {skip}")
        a(f"s_cmp_lg_u32 s{s_kl}, 0")
        a(f"s_cbranch_scc1 {nodec}")
        type_of(s_jobl, s_typel)
        a(f"s_and_b32 s{s_t0}, s{s_jobl}, 15")
        a(f"s_mul_i32 s{s_aso}, s{s_t0}, {128*1280}")
        a(f"s_mul_i32 s{s_t1}, s{s_w}, {32*1280}")
        a(f"s_add_u32 s{s_aso}, s{s_aso}, s{s_t1}")
        a(f"v_lshlrev_b32 v{v_t}, 1, v{v_g}")
        a(f"v_xor_b32 v{v_t}, v{v_t}, v{v_n}")
        a(f"s_lshr_b32 s{s_t1}, s{s_jobl}, 4")
        a(f"s_cmp_eq_u32 s{s_typel}, 3")
        a(f"s_cbranch_scc1 {gu}")
        a(f"s_cmp_eq_u32 s{s_typel}, 1")
        a(f"s_cselect_b32 s{SRD_B}, s{S_WK}, s{S_WQ}")
        a(f"s_cselect_b32 s{SRD_B+1}, s{S_WK+1}, s{S_WQ+1}")
        a(f"s_cmp_eq_u32 s{s_typel}, 2")
        a(f"s_cselect_b32 s{SRD_B}, s{S_WV}, s{SRD_B}")
        a(f"s_cselect_b32 s{SRD_B+1}, s{S_WV+1}, s{SRD_B+1}")
        a(f"s_and_b32 s{SRD_B+1}, s{SRD_B+1}, 0xffff")
        a(f"s_mov_b32 s{SRD_B+2}, {640*8192}")
        a(f"s_mov_b32 s{s_rs}, 8192")
        a(f"s_and_b32 s{s_t1}, s{s_t1}, 31")
        a(f"s_lshl_b32 s{s_t1}, s{s_t1}, 8")
        a(f"v_lshlrev_b32 v{v_b0}, 13, v{v_g}")
        a(f"v_lshl_add_u32 v{v_b0}, v{v_t}, 4, v{v_b0}")
        a(f"v_add_u32 v{v_b0}, s{s_t1}, v{v_b0}")
        a(f"v_xor_b32 v{v_b1}, 128, v{v_b0}")
        a(f"s_branch {dec_done}")
        a.label(gu)
        a(f"s_mov_b32 s{SRD_B}, s{S_WG}")
        a(f"s_and_b32 s{SRD_B+1}, s{S_WG+1}, 0xffff")
        a(f"s_mov_b32 s{SRD_B+2}, {640*3456}")
        a(f"s_mov_b32 s{s_rs}, 3456")
        a(f"s_sub_u32 s{s_t1}, s{s_t1}, 96")
        a(f"s_lshl_b32 s{s_t1}, s{s_t1}, 7")
        a(f"v_lshrrev_b32 v{v_t2}, 2, v{v_t}")
        a(f"v_and_b32 v{v_t}, 1, v{v_t}")
        a(f"v_lshlrev_b32 v{v_t}, 4, v{v_t}")
        a(f"v_lshl_add_u32 v{v_t}, v{v_t2}, 5, v{v_t}")
        a(f"v_xor_b32 v{v_t2}, 64, v{v_t}")
        a(f"v_mul_u32_u24 v{v_b0}, 3456, v{v_g}")
        a(f"v_add_u32 v{v_b0}, s{s_t1}, v{v_b0}")
        a(f"v_add_u32 v{v_b1}, v{v_b0}, v{v_t2}")
        a(f"v_add_u32 v{v_b0}, v{v_b0}, v{v_t}")
        a.label(dec_done)
        a(f"s_lshl_b32 s{s_t0}, s{s_w}, 4")
        a(f"s_mul_i32 s{s_bso}, s{s_t0}, s{s_rs}")
        a.label(nodec)
        a(f"s_lshl_b32 s{s_t0}, s{s_w}, 12")
        a(f"s_add_u32 s{s_t0}, s{s_t0}, s{s_slotl}")
        a(f"s_mov_b32 s{s_t1}, s{s_aso}")
        for i in range(4):
            a(f"s_add_u32 m0, s{s_t0}, {i*1024}")
            if i: a(f"s_add_u32 s{s_t1}, s{s_aso}, {i*8*1280}")
            else: a("s_nop 0")
            a(f"buffer_load_dwordx4 v{v_aoff}, s[{SRD_A}:{SRD_A+3}], s{s_t1} offen lds")
        a(f"s_add_u32 s{s_aso}, s{s_aso}, 128")
        a(f"s_add_u32 s{s_t0}, s{s_t0}, 16384")
        a(f"s_lshl_b32 s{s_t2}, s{s_rs}, 2")
        a(f"s_mov_b32 s{s_t1}, s{s_bso}")
        a(f"s_cmp_eq_u32 s{s_typel}, 3")
        a(f"s_cbranch_scc1 {bgu}")
        for i in range(4):
            a(f"s_add_u32 m0, s{s_t0}, {i*1024}")
            if i: a(f"s_add_u32 s{s_t1}, s{s_t1}, s{s_t2}")
            else: a("s_nop 0")
            a(f"buffer_load_dwordx4 v{v_b0 if i < 2 else v_b1}, s[{SRD_B}:{SRD_B+3}], s{s_t1} offen lds")
        a(f"s_branch {bdone}")
        a.label(bgu)
        for i in range(4):
            a(f"s_add_u32 m0, s{s_t0}, {i*1024}")
            if i: a(f"s_add_u32 s{s_t1}, s{s_t1}, s{s_t2}")
            a(f"s_mov_b64 exec, s[{S_MG}:{S_MG+1}]")
            a(f"buffer_load_dwordx4 v{v_b0 if i < 2 else v_b1}, s[{SRD_B}:{SRD_B+3}], s{s_t1} offen lds")
            a(f"s_mov_b64 exec, s[{S_MU}:{S_MU+1}]")
            a(f"buffer_load_dwordx4 v{v_b0 if i < 2 else v_b1}, s[{SRD_U}:{SRD_U+3}], s{s_t1} offen lds")
        a("s_mov_b64 exec, -1")
        a.label(bdone)
        a(f"s_lshl_b32 s{s_t2}, s{s_rs}, 6")
        a(f"s_add_u32 s{s_bso}, s{s_bso}, s{s_t2}")
        a(f"s_add_u32 s{s_slotl}, s{s_slotl}, 32768")
        a(f"s_and_b32 s{s_slotl}, s{s_slotl}, {4*32768-1}")
        a(f"s_add_u32 s{s_kl}, s{s_kl}, 1")
        a(f"s_cmp_lt_u32 s{s_kl}, 10")
        a(f"s_cbranch_scc1 {skip}")
        a(f"s_mov_b32 s{s_kl}, 0")
        a(f"s_add_u32 s{s_seql}, s{s_seql}, {nwg}")
        map_job(s_seql, s_jobl)
        a(f"s_cmp_ge_u32 s{s_seql}, {NJOBS1}")
        a(f"s_cselect_b32 s{s_ldone}, 1, 0")
        a.label(skip)

    def read_frags(st, ks):
        for b in range(4):
            areg = v_ar if ks == 0 else v_t4
            a(f"ds_read_b128 {vr(v_fa + st*16 + 4*b, 4)}, v{areg} offset:{b*2048}")
        for t in range(4):
            a(f"ds_read_b64_tr_b16 {vr(v_fb + st*16 + 4*t, 2)}, v{v_e + 8 + t} offset:{ks*8192}")
            a(f"ds_read_b64_tr_b16 {vr(v_fb + st*16 + 4*t + 2, 2)}, v{v_e + 8 + t} offset:{ks*8192 + 1024}")

    def set_addr():
        a(f"v_add_u32 v{v_ar}, s{s_slotc}, v{v_ard}")
        a(f"v_xor_b32 v{v_t4}, 64, v{v_ar}")
        a(f"v_add_u32 v{v_br}, s{s_slotc}, v{v_brd}")
        for t in range(4):
            a(f"v_xor_b32 v{v_e + 8 + t}, {t*32}, v{v_br}")

    def mfmas(st, first, orient):
        k = 0
        for b in range(4):
            for t in range(4):
                acc = vr(v_acc + (t*4 + b)*4, 4)
                A = vr(v_fa + st*16 + 4*b, 4); Bf = vr(v_fb + st*16 + 4*t, 4)
                c = "0" if first else acc
                if orient == 0:
                    a(f"v_mfma_f32_16x16x32_bf16 {acc}, {Bf}, {A}, {c}")
                else:
                    a(f"v_mfma_f32_16x16x32_bf16 {acc}, {A}, {Bf}, {c}")

    for i in range(4):
        load_stage()
    type_of(s_jobc, s_typec)
    a("s_waitcnt vmcnt(24)")
    a("s_barrier")
    set_addr()
    read_frags(0, 0)
    a.label(f"{name}_loop")
    read_frags(1, 1)
    a("s_waitcnt lgkmcnt(12)")
    for orient in (0, 1):
        pass
    def variant(st, firstflag):
        l1 = a.newlabel(f"{name}_v1"); l2 = a.newlabel(f"{name}_v2"); l3 = a.newlabel(f"{name}_v3"); le = a.newlabel(f"{name}_ve")
        if firstflag:
            a(f"s_cmp_eq_u32 s{s_kc}, 0")
            a(f"s_cbranch_scc1 {l2}")
        a(f"s_cmp_eq_u32 s{s_typec}, 2")
        a(f"s_cbranch_scc1 {l1}")
        mfmas(st, False, 0)
        a(f"s_branch {le}")
        a.label(l1)
        mfmas(st, False, 1)
        if firstflag:
            a(f"s_branch {le}")
            a.label(l2)
            a(f"s_cmp_eq_u32 s{s_typec}, 2")
            a(f"s_cbranch_scc1 {l3}")
            mfmas(st, True, 0)
            a(f"s_branch {le}")
            a.label(l3)
            mfmas(st, True, 1)
        a.label(le)
    variant(0, True)
    lw = a.newlabel(f"{name}_w0"); lw2 = a.newlabel(f"{name}_w1")
    a(f"s_cmp_lg_u32 s{s_ldone}, 0")
    a(f"s_cbranch_scc1 {lw}")
    a("s_waitcnt vmcnt(16) lgkmcnt(0)")
    a(f"s_branch {lw2}")
    a.label(lw)
    a("s_waitcnt vmcnt(0) lgkmcnt(0)")
    a.label(lw2)
    a("s_barrier")
    load_stage()
    a(f"s_add_u32 s{s_slotc}, s{s_slotc}, 32768")
    a(f"s_and_b32 s{s_slotc}, s{s_slotc}, {4*32768-1}")
    set_addr()
    read_frags(0, 0)
    variant(1, False)
    a(f"s_add_u32 s{s_kc}, s{s_kc}, 1")
    a(f"s_cmp_lt_u32 s{s_kc}, 10")
    a(f"s_cbranch_scc1 {name}_loop")
    a("s_nop 7")
    a("s_nop 1")
    a(f"s_and_b32 s{s_t0}, s{s_jobc}, 15")
    a(f"s_lshr_b32 s{s_t1}, s{s_jobc}, 4")
    a(f"s_cmp_eq_u32 s{s_typec}, 2")
    a(f"s_cbranch_scc1 {name}_epv")
    a(f"s_cmp_eq_u32 s{s_typec}, 3")
    a(f"s_cbranch_scc1 {name}_epgu")
    a(f"s_lshl_b32 s{s_t2}, s{s_typec}, 24")
    a(f"s_lshl_b32 s{s_t0}, s{s_t0}, 1")
    a(f"s_add_u32 s{s_t0}, s{s_t0}, s{s_wm}")
    a(f"s_lshl_b32 s{s_t0}, s{s_t0}, 19")
    a(f"s_add_u32 s{s_t2}, s{s_t2}, s{s_t0}")
    a(f"s_and_b32 s{s_t1}, s{s_t1}, 31")
    a(f"s_lshl_b32 s{s_t1}, s{s_t1}, 1")
    a(f"s_add_u32 s{s_t1}, s{s_t1}, s{s_wn}")
    a(f"s_lshl_b32 s{s_t1}, s{s_t1}, 7")
    a(f"s_add_u32 s{s_t2}, s{s_t2}, s{s_t1}")
    a(f"s_add_u32 s{S_OB}, s{S_WS}, s{s_t2}")
    a(f"s_addc_u32 s{S_OB+1}, s{S_WS+1}, 0")
    a(f"v_lshlrev_b32 v{v_so}, 13, v{v_n}")
    a(f"v_lshl_add_u32 v{v_so}, v{v_g}, 3, v{v_so}")
    for b in range(4):
        for t in range(4):
            ac = v_acc + (t*4 + b)*4
            e = v_e + (t % 2) * 2
            a(f"v_cvt_pk_bf16_f32 v{e}, v{ac}, v{ac+1}")
            a(f"v_cvt_pk_bf16_f32 v{e+1}, v{ac+2}, v{ac+3}")
            a(f"global_store_dwordx2 v{v_so}, {vr(e,2)}, s[{S_OB}:{S_OB+1}] offset:{t*32} sc1")
        if b < 3: a(f"v_add_u32 v{v_so}, 0x20000, v{v_so}")
    a(f"s_branch {name}_epd")
    a.label(f"{name}_epv")
    a(f"s_and_b32 s{s_t1}, s{s_t1}, 31")
    a(f"s_lshl_b32 s{s_t1}, s{s_t1}, 1")
    a(f"s_add_u32 s{s_t1}, s{s_t1}, s{s_wn}")
    a(f"s_lshl_b32 s{s_t1}, s{s_t1}, 18")
    a(f"s_lshl_b32 s{s_t0}, s{s_t0}, 1")
    a(f"s_add_u32 s{s_t0}, s{s_t0}, s{s_wm}")
    a(f"s_lshl_b32 s{s_t0}, s{s_t0}, 7")
    a(f"s_add_u32 s{s_t2}, s{s_t1}, s{s_t0}")
    a(f"s_add_u32 s{s_t2}, s{s_t2}, {WS_VT}")
    a(f"s_add_u32 s{S_OB}, s{S_WS}, s{s_t2}")
    a(f"s_addc_u32 s{S_OB+1}, s{S_WS+1}, 0")
    a(f"v_lshlrev_b32 v{v_so}, 12, v{v_n}")
    a(f"v_lshl_add_u32 v{v_so}, v{v_g}, 3, v{v_so}")
    for t in range(4):
        for b in range(4):
            ac = v_acc + (t*4 + b)*4
            e = v_e + (b % 2) * 2
            a(f"v_cvt_pk_bf16_f32 v{e}, v{ac}, v{ac+1}")
            a(f"v_cvt_pk_bf16_f32 v{e+1}, v{ac+2}, v{ac+3}")
            a(f"global_store_dwordx2 v{v_so}, {vr(e,2)}, s[{S_OB}:{S_OB+1}] offset:{b*32} sc1")
        if t < 3: a(f"v_add_u32 v{v_so}, 0x10000, v{v_so}")
    a(f"s_branch {name}_epd")
    a.label(f"{name}_epgu")
    a(f"s_lshl_b32 s{s_t0}, s{s_t0}, 1")
    a(f"s_add_u32 s{s_t0}, s{s_t0}, s{s_wm}")
    a(f"s_mul_i32 s{s_t0}, s{s_t0}, {64*3456}")
    a(f"s_sub_u32 s{s_t1}, s{s_t1}, 96")
    a(f"s_lshl_b32 s{s_t1}, s{s_t1}, 1")
    a(f"s_add_u32 s{s_t1}, s{s_t1}, s{s_wn}")
    a(f"s_lshl_b32 s{s_t1}, s{s_t1}, 6")
    a(f"s_add_u32 s{s_t2}, s{s_t1}, s{s_t0}")
    a(f"s_add_u32 s{s_t2}, s{s_t2}, {WS_H}")
    a(f"s_add_u32 s{S_OB}, s{S_WS}, s{s_t2}")
    a(f"s_addc_u32 s{S_OB+1}, s{S_WS+1}, 0")
    a(f"v_mul_u32_u24 v{v_so}, 3456, v{v_n}")
    a(f"v_lshl_add_u32 v{v_so}, v{v_g}, 3, v{v_so}")
    E = v_e
    for b in range(4):
        for p in range(2):
            ag = v_acc + ((2*p)*4 + b)*4
            au = v_acc + ((2*p+1)*4 + b)*4
            a(f"v_cvt_pk_bf16_f32 v{E}, v{ag}, v{ag+1}")
            a(f"v_cvt_pk_bf16_f32 v{E+1}, v{ag+2}, v{ag+3}")
            a(f"v_cvt_pk_bf16_f32 v{E+2}, v{au}, v{au+1}")
            a(f"v_cvt_pk_bf16_f32 v{E+3}, v{au+2}, v{au+3}")
            for r in range(4):
                src = E + r // 2
                if r % 2 == 0:
                    a(f"v_lshlrev_b32 v{ag+r}, 16, v{src}")
                    a(f"v_lshlrev_b32 v{au+r}, 16, v{src+2}")
                else:
                    a(f"v_and_b32 v{ag+r}, 0xffff0000, v{src}")
                    a(f"v_and_b32 v{au+r}, 0xffff0000, v{src+2}")
            for r in range(4):
                a(f"v_mul_f32 v{E+4+r}, v{ag+r}, v{ag+r}")
            for r in range(4):
                a(f"v_mul_f32 v{E+4+r}, s{s_c2}, v{E+4+r}")
            for r in range(4):
                a(f"v_fma_f32 v{E+4+r}, v{E+4+r}, v{ag+r}, v{ag+r}")
            for r in range(4):
                a(f"v_mul_f32 v{E+4+r}, s{s_c1}, v{E+4+r}")
            for r in range(4):
                a(f"v_exp_f32 v{E+4+r}, v{E+4+r}")
            a("s_nop 0")
            for r in range(4):
                a(f"v_add_f32 v{E+4+r}, 1.0, v{E+4+r}")
            for r in range(4):
                a(f"v_rcp_f32 v{E+4+r}, v{E+4+r}")
            a("s_nop 0")
            for r in range(4):
                a(f"v_mul_f32 v{E+4+r}, v{E+4+r}, v{ag+r}")
            a(f"v_cvt_pk_bf16_f32 v{E}, v{E+4}, v{E+5}")
            a(f"v_cvt_pk_bf16_f32 v{E+1}, v{E+6}, v{E+7}")
            a(f"v_lshlrev_b32 v{E+4}, 16, v{E}")
            a(f"v_and_b32 v{E+5}, 0xffff0000, v{E}")
            a(f"v_lshlrev_b32 v{E+6}, 16, v{E+1}")
            a(f"v_and_b32 v{E+7}, 0xffff0000, v{E+1}")
            for r in range(4):
                a(f"v_mul_f32 v{E+4+r}, v{E+4+r}, v{au+r}")
            a(f"v_cvt_pk_bf16_f32 v{ag}, v{E+4}, v{E+5}")
            a(f"v_cvt_pk_bf16_f32 v{ag+1}, v{E+6}, v{E+7}")
            a(f"global_store_dwordx2 v{v_so}, {vr(ag,2)}, s[{S_OB}:{S_OB+1}] offset:{p*32} sc1")
        if b < 3: a(f"v_add_u32 v{v_so}, {16*3456}, v{v_so}")
    a.label(f"{name}_epd")
    a("s_waitcnt vmcnt(0)")
    a("s_barrier")
    a(f"s_cmp_lg_u32 s{s_w}, 0")
    a(f"s_cbranch_scc1 {name}_nosig")
    a(f"s_mov_b32 s{s_t0}, 1")
    a(f"s_cmp_eq_u32 s{s_typec}, 0")
    a(f"s_cselect_b32 s{s_t0}, 256, s{s_t0}")
    a(f"s_cmp_eq_u32 s{s_typec}, 3")
    a(f"s_cselect_b32 s{s_t0}, 65536, s{s_t0}")
    a(f"s_and_b32 s{s_t1}, s{s_jobc}, 15")
    a(f"s_lshl_b32 s{s_t1}, s{s_t1}, 2")
    a(f"v_mov_b32 v{v_e}, s{s_t0}")
    a(f"v_mov_b32 v{v_e+1}, s{s_t1}")
    a("s_mov_b64 exec, 1")
    a(f"global_atomic_add v{v_e+1}, v{v_e}, s[{S_DBGW}:{S_DBGW+1}] sc1")
    a("s_mov_b64 exec, -1")
    a.label(f"{name}_nosig")
    a(f"s_mov_b32 s{s_kc}, 0")
    a(f"s_add_u32 s{s_seqc}, s{s_seqc}, {nwg}")
    map_job(s_seqc, s_jobc)
    type_of(s_jobc, s_typec)
    a(f"s_cmp_lt_u32 s{s_seqc}, {NJOBS1}")
    a(f"s_cbranch_scc1 {name}_loop")
    a("s_waitcnt vmcnt(0) lgkmcnt(0)")
    a("s_barrier")
```

```python
from gen_common import *
WS_PROG = 112 * MB
NWORK = 128

MSTRIDE = 1312
LDS_MEM = 0
LDS_SP  = 10496
SPSTRIDE = 208
LDS_VP  = LDS_SP + 32 * SPSTRIDE
LDS_RED = LDS_VP + 2048
REC_LDS = 3 * 40960
SPIN_MAX = 1 << 20
SCALE_LOG2E = 128 ** -0.5 * 1.4426950408889634

import struct
def f32bits(x):
    return struct.unpack("<I", struct.pack("<f", x))[0]

def gen_rec_body(a, name, nsteps=64, prof=False, RC=RC, PRESLEEP=0, POLLSLEEP=0, GPRE=0, GPOLL=0, TL=0):
    NST = 10
    def stamp(i):
        if prof:
            a(f"s_memtime s[{64+2*i}:{65+2*i}]")
            a("s_waitcnt lgkmcnt(0)")
    def wq(t, ks): return ar((t * 20 + ks) * 4, 4)
    def wk(t, ks):
        i = t * 20 + ks
        if i < 24: return ar(160 + i * 4, 4)
        return vr(112 + (i - 24) * 4, 4)
    def wk2(t, ks, half):
        i = t * 20 + ks
        if i < 24: return ar(160 + i * 4 + 2 * half, 2)
        return vr(112 + (i - 24) * 4 + 2 * half, 2)
    def wv(i): return vr(176 + i * 4, 4)
    def wo(t): return vr(216 + t * 4, 4)
    V = Alloc(1, 112)
    v_l = V.get("l"); v_n = V.get("n"); v_g = V.get("g")
    v_fr = V.get("fragaddr")
    v_g0 = V.get("g0"); v_g1 = V.get("g1"); v_g2 = V.get("g2")
    v_w0 = V.get("w0"); v_w1 = V.get("w1"); v_w2 = V.get("w2")
    v_spw = V.get("spw"); v_spr = V.get("spr"); v_vpw = V.get("vpw"); v_vpr = V.get("vpr")
    v_kt = V.get("ktoff"); v_vt = V.get("vtoff"); v_km = V.get("kmoff"); v_vm = V.get("vmoff")
    v_part = V.get("partoff"); v_t = V.get("t"); v_t2 = V.get("t2"); v_t3 = V.get("t3")
    v_redw = V.get("redw"); v_redr = V.get("redr"); v_pub = V.get("pub")
    v_frag = V.get("frag", 16, 4)
    v_acc = V.get("acc", 20, 4)
    v_kf = V.get("kf", 4, 4)
    v_ktk = V.get("ktok", 8, 4)
    v_qf = V.get("qf", 4, 4)
    v_vtk = V.get("vtok", 8, 4)
    v_s = V.get("s", 12, 4)
    v_p = V.get("p", 6, 2)
    v_vf = V.get("vf", 4, 2)
    v_big = v_frag
    v_stmp = v_acc
    s_h, s_j, s_w = 3, 4, 5
    S_MEM0, S_WQ, S_WK, S_WV, S_WO, S_WS = 6, 8, 10, 12, 14, 16
    S_KT, S_VT, S_KM, S_VM, S_MB, S_PT = 18, 20, 22, 24, 26, 28
    s_step = 30; s_t0 = 31
    S_MN8, S_MG2, S_TB, S_TB2 = 32, 34, 36, 38
    s_spin = 40; s_t1 = 41; s_c = 42; s_t2 = 43; S_SV = 44; S_PB = 46; S_MBS = 48; S_RB = 50

    S_DBG = 52; s_kvm = 54; S_PG = 56
    a("s_load_dwordx2 s[52:53], s[0:1], 104")
    a("s_load_dwordx2 s[6:7], s[0:1], 8")
    a("s_load_dwordx4 s[8:11], s[0:1], 16")
    a("s_load_dwordx4 s[12:15], s[0:1], 32")
    a("s_load_dwordx2 s[16:17], s[0:1], 112")
    a(f"s_lshr_b32 s{s_h}, s2, 2")
    a(f"s_and_b32 s{s_j}, s2, 3")
    a(f"v_lshrrev_b32 v{v_t}, 6, v0")
    a(f"v_and_b32 v{v_l}, 63, v0")
    a(f"v_readfirstlane_b32 s{s_w}, v{v_t}")
    a(f"v_and_b32 v{v_n}, 15, v0")
    a(f"v_lshrrev_b32 v{v_g}, 4, v{v_l}")
    a(f"v_cmp_gt_u32 s[{S_MN8}:{S_MN8+1}], 8, v{v_n}")
    a(f"v_cmp_gt_u32 s[{S_MG2}:{S_MG2+1}], 2, v{v_g}")
    a("s_waitcnt lgkmcnt(0)")
    for (sb, off) in ((S_KT, WS_K), (S_VT, WS_VT), (S_KM, WS_KMEM), (S_VM, WS_VMEMT), (S_MB, WS_MEMB), (S_PT, WS_PART)):
        a(f"s_add_u32 s{sb}, s{S_WS}, {off}")
        a(f"s_addc_u32 s{sb+1}, s{S_WS+1}, 0")
    v_sg = v_g0; v_sl = v_g1; v_tq = v_w0; v_tk = v_w1; v_tv = v_w2
    a(f"v_lshrrev_b32 v{v_sg}, 4, v0")
    a(f"v_lshlrev_b32 v{v_sg}, 13, v{v_sg}")
    a(f"v_lshlrev_b32 v{v_t}, 4, v{v_n}")
    a(f"v_add_u32 v{v_sg}, v{v_sg}, v{v_t}")
    a(f"s_lshl_b32 s{s_t0}, s{s_h}, 8")
    a(f"v_add_u32 v{v_sg}, s{s_t0}, v{v_sg}")
    a(f"v_lshlrev_b32 v{v_sl}, 4, v0")
    a(f"v_lshrrev_b32 v{v_t}, 2, v{v_n}")
    a(f"v_lshl_add_u32 v{v_t}, v{v_g}, 3, v{v_t}")
    a(f"v_lshlrev_b32 v{v_t}, 8, v{v_t}")
    a(f"v_and_b32 v{v_t2}, 3, v0")
    a(f"v_lshl_add_u32 v{v_t}, v{v_t2}, 3, v{v_t}")
    a(f"s_lshl_b32 s{s_t0}, s{s_w}, 6")
    a(f"v_add_u32 v{v_tq}, s{s_t0}, v{v_t}")
    a(f"v_add_u32 v{v_tk}, 40960, v{v_tq}")
    a(f"s_and_b32 s{s_t0}, s{s_w}, 1")
    a(f"s_lshl_b32 s{s_t0}, s{s_t0}, 5")
    a(f"s_lshl_b32 s{s_t1}, s{s_j}, 6")
    a(f"s_add_u32 s{s_t0}, s{s_t0}, s{s_t1}")
    a(f"s_add_u32 s{s_t0}, s{s_t0}, 81920")
    a(f"v_add_u32 v{v_tv}, s{s_t0}, v{v_t}")
    for rnd in range(4):
        for m, sb in enumerate((S_WQ, S_WK, S_WV)):
            for i in range(10):
                off = (160 * rnd + 16 * i) * 8192
                a(f"s_add_u32 s{S_TB}, s{sb}, {off}")
                a(f"s_addc_u32 s{S_TB+1}, s{sb+1}, 0")
                a(f"global_load_dwordx4 {vr(v_big + 4*i, 4)}, v{v_sg}, s[{S_TB}:{S_TB+1}]")
            for i in range(10):
                a(f"s_waitcnt vmcnt({9-i})")
                a(f"ds_write_b128 v{v_sl}, {vr(v_big + 4*i, 4)} offset:{i*4096}" if m == 0 else
                  f"ds_write_b128 v{v_t3}, {vr(v_big + 4*i, 4)} offset:{i*4096}")
            a(f"v_add_u32 v{v_t3}, {40960*(m+1)}, v{v_sl}")
        a("s_waitcnt lgkmcnt(0)")
        a("s_barrier")
        for ksl in range(5):
            ks = rnd * 5 + ksl
            for t in range(2):
                i = t * 20 + ks
                a(f"ds_read_b64_tr_b16 {ar(i*4, 2)}, v{v_tq} offset:{ksl*8192 + 32*t}")
                a(f"ds_read_b64_tr_b16 {ar(i*4+2, 2)}, v{v_tq} offset:{ksl*8192 + 32*t + 1024}")
                a(f"ds_read_b64_tr_b16 {wk2(t, ks, 0)}, v{v_tk} offset:{ksl*8192 + 32*t}")
                a(f"ds_read_b64_tr_b16 {wk2(t, ks, 1)}, v{v_tk} offset:{ksl*8192 + 32*t + 1024}")
        lab = a.newlabel("L_skipv")
        a(f"s_lshr_b32 s{s_t0}, s{s_w}, 1")
        a(f"s_cmp_lg_u32 s{s_t0}, {rnd >> 1}")
        a(f"s_cbranch_scc1 {lab}")
        for ksl in range(5):
            i = (rnd & 1) * 5 + ksl
            a(f"ds_read_b64_tr_b16 {vr(176 + i*4, 2)}, v{v_tv} offset:{ksl*8192}")
            a(f"ds_read_b64_tr_b16 {vr(176 + i*4 + 2, 2)}, v{v_tv} offset:{ksl*8192 + 1024}")
        a.label(lab)
        a("s_waitcnt lgkmcnt(0)")
        a("s_barrier")
    a(f"s_lshl_b32 s{s_t0}, s2, 5")
    a(f"s_mul_i32 s{s_t0}, s{s_t0}, 1280")
    a(f"s_add_u32 s{S_TB}, s{S_WO}, s{s_t0}")
    a(f"s_addc_u32 s{S_TB+1}, s{S_WO+1}, 0")
    for i in range(10):
        a(f"v_add_u32 v{v_t2}, {i*4096}, v{v_sl}")
        a(f"global_load_dwordx4 {vr(v_big + 4*i, 4)}, v{v_t2}, s[{S_TB}:{S_TB+1}]")
    for i in range(10):
        a(f"s_waitcnt vmcnt({9-i})")
        a(f"ds_write_b128 v{v_sl}, {vr(v_big + 4*i, 4)} offset:{i*4096}")
    a("s_waitcnt lgkmcnt(0)")
    a("s_barrier")
    a(f"v_lshrrev_b32 v{v_t}, 2, v{v_n}")
    a(f"v_lshl_add_u32 v{v_t}, v{v_g}, 2, v{v_t}")
    a(f"v_mul_u32_u24 v{v_t}, 1280, v{v_t}")
    a(f"v_and_b32 v{v_t2}, 3, v0")
    a(f"v_lshl_add_u32 v{v_t}, v{v_t2}, 3, v{v_t}")
    a(f"s_mul_i32 s{s_t0}, s{s_w}, 320")
    a(f"v_add_u32 v{v_t}, s{s_t0}, v{v_t}")
    for t in range(10):
        a(f"ds_read_b64_tr_b16 {vr(216 + t*4, 2)}, v{v_t} offset:{32*t}")
        a(f"ds_read_b64_tr_b16 {vr(216 + t*4 + 2, 2)}, v{v_t} offset:{32*t + 16*1280}")
    a("s_waitcnt lgkmcnt(0)")
    a("s_barrier")
    a(f"v_and_b32 v{v_t}, 7, v0")
    a(f"v_mul_u32_u24 v{v_fr}, {MSTRIDE}, v{v_t}")
    a(f"v_lshl_add_u32 v{v_fr}, v{v_g}, 4, v{v_fr}")
    a(f"v_lshlrev_b32 v{v_g0}, 4, v0")
    a(f"v_add_u32 v{v_g1}, 4096, v{v_g0}")
    a(f"v_add_u32 v{v_g2}, 8192, v{v_g0}")
    a(f"v_mul_u32_u24 v{v_w0}, {MSTRIDE}, v{v_t}")
    a(f"v_lshrrev_b32 v{v_t2}, 3, v0")
    a(f"v_lshl_add_u32 v{v_w0}, v{v_t2}, 4, v{v_w0}")
    a(f"v_add_u32 v{v_w1}, 512, v{v_w0}")
    a(f"v_add_u32 v{v_w2}, 1024, v{v_w0}")
    a(f"v_mul_u32_u24 v{v_spw}, {SPSTRIDE}, v{v_n}")
    a(f"v_lshl_add_u32 v{v_spw}, v{v_g}, 4, v{v_spw}")
    a(f"s_mul_i32 s{s_t0}, s{s_w}, {8*SPSTRIDE}")
    a(f"s_add_u32 s{s_t0}, s{s_t0}, {LDS_SP}")
    a(f"v_add_u32 v{v_spw}, s{s_t0}, v{v_spw}")
    a(f"v_mul_u32_u24 v{v_spr}, {SPSTRIDE}, v{v_t}")
    a(f"v_lshl_add_u32 v{v_spr}, v{v_g}, 4, v{v_spr}")
    a(f"v_add_u32 v{v_spr}, {LDS_SP}, v{v_spr}")
    a(f"v_lshlrev_b32 v{v_vpw}, 5, v{v_n}")
    a(f"v_and_b32 v{v_t2}, 1, v{v_g}")
    a(f"v_lshl_add_u32 v{v_vpr}, v{v_t2}, 4, v{v_vpw}")
    a(f"v_add_u32 v{v_vpr}, {LDS_VP}, v{v_vpr}")
    a(f"v_lshl_add_u32 v{v_vpw}, v{v_g}, 4, v{v_vpw}")
    a(f"s_lshl_b32 s{s_t0}, s{s_w}, 9")
    a(f"s_add_u32 s{s_t0}, s{s_t0}, {LDS_VP}")
    a(f"v_add_u32 v{v_vpw}, s{s_t0}, v{v_vpw}")
    a(f"v_lshlrev_b32 v{v_kt}, 13, v{v_n}")
    a(f"v_lshl_add_u32 v{v_kt}, v{v_g}, 3, v{v_kt}")
    a(f"s_lshl_b32 s{s_t0}, s{s_h}, 8")
    a(f"s_lshl_b32 s{s_t1}, s{s_w}, 6")
    a(f"s_add_u32 s{s_t0}, s{s_t0}, s{s_t1}")
    a(f"v_add_u32 v{v_kt}, s{s_t0}, v{v_kt}")
    a(f"v_lshlrev_b32 v{v_vt}, 12, v{v_n}")
    a(f"v_lshl_add_u32 v{v_vt}, v{v_g}, 3, v{v_vt}")
    a(f"s_lshl_b32 s{s_t0}, s2, 17")
    a(f"v_add_u32 v{v_vt}, s{s_t0}, v{v_vt}")
    a(f"v_lshlrev_b32 v{v_km}, 13, v{v_n}")
    a(f"v_lshl_add_u32 v{v_km}, v{v_g}, 3, v{v_km}")
    a(f"s_lshl_b32 s{s_t0}, s2, 6")
    a(f"v_add_u32 v{v_km}, s{s_t0}, v{v_km}")
    a(f"v_lshlrev_b32 v{v_vm}, 4, v{v_n}")
    a(f"v_lshl_add_u32 v{v_vm}, v{v_g}, 3, v{v_vm}")
    a(f"s_lshl_b32 s{s_t0}, s2, 9")
    a(f"v_add_u32 v{v_vm}, s{s_t0}, v{v_vm}")
    a(f"v_lshrrev_b32 v{v_part}, 1, v{v_g}")
    a(f"v_lshlrev_b32 v{v_part}, 15, v{v_part}")
    a(f"v_lshl_add_u32 v{v_part}, v{v_n}, 5, v{v_part}")
    a(f"v_and_b32 v{v_t2}, 1, v{v_g}")
    a(f"v_lshl_add_u32 v{v_part}, v{v_t2}, 4, v{v_part}")
    a(f"s_mul_i32 s{s_t0}, s{s_w}, {20*32768}")
    a(f"s_lshl_b32 s{s_t1}, s2, 8")
    a(f"s_add_u32 s{s_t0}, s{s_t0}, s{s_t1}")
    a(f"v_add_u32 v{v_part}, s{s_t0}, v{v_part}")
    a(f"v_lshlrev_b32 v{v_redw}, 4, v0")
    a(f"v_add_u32 v{v_redw}, {LDS_RED}, v{v_redw}")
    a(f"v_lshlrev_b32 v{v_redr}, 3, v{v_l}")
    a(f"v_add_u32 v{v_redr}, {LDS_RED}, v{v_redr}")
    a(f"v_lshlrev_b32 v{v_pub}, 2, v{v_l}")
    a(f"s_lshl_b32 s{s_t0}, s2, 7")
    a(f"v_add_u32 v{v_pub}, s{s_t0}, v{v_pub}")
    a(f"s_mov_b32 s{s_c}, {f32bits(SCALE_LOG2E)}")
    a(f"s_mov_b32 s{s_step}, 0")
    a(f"s_and_b32 s{s_t0}, s2, {RC-1}")
    a(f"s_mul_i32 s{s_t0}, s{s_t0}, 10240")
    a(f"s_add_u32 s{S_MBS}, s{S_MB}, s{s_t0}")
    a(f"s_addc_u32 s{S_MBS+1}, s{S_MB+1}, 0")

    a(f"s_lshl_b32 s{s_t0}, s2, 2")
    a(f"s_add_u32 s{s_t0}, s{s_t0}, {WS_PROG}")
    a(f"s_add_u32 s{S_PG}, s{S_WS}, s{s_t0}")
    a(f"s_addc_u32 s{S_PG+1}, s{S_WS+1}, 0")
    a(f"s_mov_b32 s{s_kvm}, 0")
    a(f"s_mov_b32 s{s_spin}, 0")
    a(f"v_mov_b32 v{v_t2}, 0")
    a.label(f"{name}_cw")
    a(f"global_load_dword v{v_t}, v{v_t2}, s[{S_DBG}:{S_DBG+1}] offset:64 sc1")
    a(f"s_add_u32 s{s_spin}, s{s_spin}, 1")
    a("s_waitcnt vmcnt(0)")
    a(f"v_readfirstlane_b32 s{s_t0}, v{v_t}")
    a(f"s_cmp_ge_u32 s{s_spin}, {SPIN_MAX}")
    a(f"s_cbranch_scc1 {name}_loop")
    a(f"s_cmp_lt_u32 s{s_t0}, {NWORK}")
    a(f"s_cbranch_scc1 {name}_cw")
    a.label(f"{name}_loop")
    stamp(0)
    if TL:
        a("s_memrealtime s[64:65]")
        a(f"s_lshl_b32 s{s_t0}, s2, 8")
        a(f"s_lshl_b32 s{s_t1}, s{s_step}, 2")
        a(f"s_add_u32 s{s_t0}, s{s_t0}, s{s_t1}")
        a(f"s_add_u32 s{s_t0}, s{s_t0}, {120*MB}")
        a(f"v_mov_b32 v{v_t2}, s{s_t0}")
        a("s_waitcnt lgkmcnt(0)")
        a(f"v_mov_b32 v{v_t}, s64")
        a(f"s_cmp_lg_u32 s{s_w}, 0")
        a(f"s_cbranch_scc1 {name}_tl0")
        a("s_mov_b64 exec, 1")
        a(f"global_store_dword v{v_t2}, v{v_t}, s[{S_WS}:{S_WS+1}]")
        a("s_mov_b64 exec, -1")
        a.label(f"{name}_tl0")
    a(f"s_lshr_b32 s{s_t0}, s{s_step}, 2")
    a(f"s_bitcmp1_b32 s{s_kvm}, s{s_t0}")
    a(f"s_cbranch_scc1 {name}_kvok")
    a(f"s_mov_b32 s{s_spin}, 0")
    a(f"v_lshlrev_b32 v{v_t2}, 2, v{v_n}")
    a.label(f"{name}_kvp")
    a(f"global_load_dword v{v_t}, v{v_t2}, s[{S_DBG}:{S_DBG+1}] sc1")
    a(f"s_add_u32 s{s_spin}, s{s_spin}, 1")
    a("s_waitcnt vmcnt(0)")
    a(f"v_and_b32 v{v_t}, 255, v{v_t}")
    a(f"v_cmp_eq_u32 vcc, 64, v{v_t}")
    a(f"s_and_b32 s{s_kvm}, vcc_lo, 0xffff")
    a(f"s_cmp_ge_u32 s{s_spin}, {SPIN_MAX}")
    a(f"s_cbranch_scc1 {name}_kvok")
    a(f"s_bitcmp1_b32 s{s_kvm}, s{s_t0}")
    a(f"s_cbranch_scc0 {name}_kvp")
    a.label(f"{name}_kvok")
    a(f"s_lshl_b32 s{s_t0}, s{s_step}, 18")
    a(f"s_add_u32 s{S_TB}, s{S_KT}, s{s_t0}")
    a(f"s_addc_u32 s{S_TB+1}, s{S_KT+1}, 0")
    a(f"v_add_u32 v{v_t}, 0x20000, v{v_kt}")
    a(f"global_load_dwordx2 {vr(v_ktk, 2)}, v{v_kt}, s[{S_TB}:{S_TB+1}] sc1")
    a(f"global_load_dwordx2 {vr(v_ktk+2, 2)}, v{v_kt}, s[{S_TB}:{S_TB+1}] offset:32 sc1")
    a(f"global_load_dwordx2 {vr(v_ktk+4, 2)}, v{v_t}, s[{S_TB}:{S_TB+1}] sc1")
    a(f"global_load_dwordx2 {vr(v_ktk+6, 2)}, v{v_t}, s[{S_TB}:{S_TB+1}] offset:32 sc1")
    a(f"s_lshl_b32 s{s_t0}, s{s_step}, 6")
    a(f"s_add_u32 s{S_TB}, s{S_VT}, s{s_t0}")
    a(f"s_addc_u32 s{S_TB+1}, s{S_VT+1}, 0")
    a(f"v_add_u32 v{v_t}, 0x10000, v{v_vt}")
    a(f"global_load_dwordx2 {vr(v_vtk, 2)}, v{v_vt}, s[{S_TB}:{S_TB+1}] sc1")
    a(f"global_load_dwordx2 {vr(v_vtk+2, 2)}, v{v_vt}, s[{S_TB}:{S_TB+1}] offset:32 sc1")
    a(f"global_load_dwordx2 {vr(v_vtk+4, 2)}, v{v_t}, s[{S_TB}:{S_TB+1}] sc1")
    a(f"global_load_dwordx2 {vr(v_vtk+6, 2)}, v{v_t}, s[{S_TB}:{S_TB+1}] offset:32 sc1")
    F = v_frag
    a(f"s_cmp_lg_u32 s{s_step}, 0")
    a(f"s_cbranch_scc1 {name}_poll")
    a(f"v_and_b32 v{v_t}, 7, v0")
    a(f"v_mul_u32_u24 v{v_t}, 1280, v{v_t}")
    a(f"v_lshrrev_b32 v{v_t2}, 3, v0")
    a(f"v_lshl_add_u32 v{v_t}, v{v_t2}, 4, v{v_t}")
    a(f"global_load_dwordx4 {vr(F, 4)}, v{v_t}, s[{S_MEM0}:{S_MEM0+1}]")
    a(f"global_load_dwordx4 {vr(F+4, 4)}, v{v_t}, s[{S_MEM0}:{S_MEM0+1}] offset:512")
    a(f"s_cmp_ge_u32 s{s_w}, 2")
    a(f"s_cbranch_scc1 {name}_g0a")
    a(f"global_load_dwordx4 {vr(F+8, 4)}, v{v_t}, s[{S_MEM0}:{S_MEM0+1}] offset:1024")
    a.label(f"{name}_g0a")
    a("s_waitcnt vmcnt(0)")
    a(f"s_branch {name}_gdone")
    a.label(f"{name}_poll")
    a(f"s_mul_i32 s{s_t0}, s{s_step}, {RC*10240}")
    a(f"s_add_u32 s{S_TB}, s{S_MBS}, s{s_t0}")
    a(f"s_addc_u32 s{S_TB+1}, s{S_MBS+1}, 0")
    a(f"s_mov_b32 s{s_spin}, 0")
    a(f"v_mov_b32 v{F+8}, 0")
    a(f"v_mov_b32 v{F+9}, 0")
    a(f"v_mov_b32 v{F+10}, 0")
    a(f"v_mov_b32 v{F+11}, 0")
    if GPRE: a(f"s_sleep {GPRE}")
    a.label(f"{name}_poll_l")
    a(f"global_load_dwordx4 {vr(F, 4)}, v{v_g0}, s[{S_TB}:{S_TB+1}] sc1")
    a(f"global_load_dwordx4 {vr(F+4, 4)}, v{v_g1}, s[{S_TB}:{S_TB+1}] sc1")
    a(f"s_cmp_ge_u32 s{s_w}, 2")
    a(f"s_cbranch_scc1 {name}_poll_b")
    a(f"global_load_dwordx4 {vr(F+8, 4)}, v{v_g2}, s[{S_TB}:{S_TB+1}] sc1")
    a.label(f"{name}_poll_b")
    a(f"s_add_u32 s{s_spin}, s{s_spin}, 1")
    a("s_waitcnt vmcnt(0)")
    a(f"v_max3_u32 v{v_t}, v{F}, v{F+1}, v{F+2}")
    a(f"v_max3_u32 v{v_t2}, v{F+3}, v{F+4}, v{F+5}")
    a(f"v_max3_u32 v{v_t}, v{F+6}, v{F+7}, v{v_t}")
    a(f"v_max3_u32 v{v_t2}, v{F+8}, v{F+9}, v{v_t2}")
    a(f"v_max3_u32 v{v_t}, v{F+10}, v{F+11}, v{v_t}")
    a(f"v_max_u32 v{v_t}, v{v_t}, v{v_t2}")
    a(f"v_cmp_eq_u32 vcc, -1, v{v_t}")
    a(f"s_cmp_ge_u32 s{s_spin}, {SPIN_MAX}")
    a(f"s_cbranch_scc1 {name}_gdone")
    if GPOLL: a(f"s_sleep {GPOLL}")
    a(f"s_cbranch_vccnz {name}_poll_l")
    a.label(f"{name}_gdone")
    stamp(1)
    a(f"ds_write_b128 v{v_w0}, {vr(F, 4)}")
    a(f"ds_write_b128 v{v_w1}, {vr(F+4, 4)}")
    a(f"s_cmp_ge_u32 s{s_w}, 2")
    a(f"s_cbranch_scc1 {name}_gw")
    a(f"ds_write_b128 v{v_w2}, {vr(F+8, 4)}")
    a.label(f"{name}_gw")
    a("s_waitcnt lgkmcnt(0)")
    a("s_barrier")
    stamp(2)
    Q0, Q1, K0, K1, VV = v_acc, v_acc + 4, v_acc + 8, v_acc + 12, v_acc + 16
    def qkv(kh):
        for ks in range(4):
            a(f"ds_read_b128 {vr(F + 4*ks, 4)}, v{v_fr} offset:{ks*64}")
        for ks in range(20):
            fb = F + 4 * (ks % 4)
            outstanding = min(3, 19 - ks)
            a(f"s_waitcnt lgkmcnt({outstanding})")
            c = lambda r: "0" if ks == 0 else vr(r, 4)
            a(f"v_mfma_f32_16x16x32_bf16 {vr(Q0,4)}, {wq(0,ks)}, {vr(fb,4)}, {c(Q0)}")
            a(f"v_mfma_f32_16x16x32_bf16 {vr(Q1,4)}, {wq(1,ks)}, {vr(fb,4)}, {c(Q1)}")
            a(f"v_mfma_f32_16x16x32_bf16 {vr(K0,4)}, {wk(0,ks)}, {vr(fb,4)}, {c(K0)}")
            a(f"v_mfma_f32_16x16x32_bf16 {vr(K1,4)}, {wk(1,ks)}, {vr(fb,4)}, {c(K1)}")
            if ks // 10 == kh:
                i = ks % 10
                a(f"v_mfma_f32_16x16x32_bf16 {vr(VV,4)}, {vr(fb,4)}, {wv(i)}, {'0' if i == 0 else vr(VV,4)}")
            if ks + 4 < 20:
                a(f"ds_read_b128 {vr(fb, 4)}, v{v_fr} offset:{(ks+4)*64}")
    a(f"s_cmp_ge_u32 s{s_w}, 2")
    a(f"s_cbranch_scc1 {name}_qkv1")
    qkv(0)
    a(f"s_branch {name}_qkvd")
    a.label(f"{name}_qkv1")
    qkv(1)
    a.label(f"{name}_qkvd")
    a("s_nop 7")
    a("s_nop 1")
    stamp(3)
    a(f"v_cvt_pk_bf16_f32 v{v_qf}, v{Q0}, v{Q0+1}")
    a(f"v_cvt_pk_bf16_f32 v{v_qf+1}, v{Q0+2}, v{Q0+3}")
    a(f"v_cvt_pk_bf16_f32 v{v_qf+2}, v{Q1}, v{Q1+1}")
    a(f"v_cvt_pk_bf16_f32 v{v_qf+3}, v{Q1+2}, v{Q1+3}")
    a(f"v_cvt_pk_bf16_f32 v{v_kf}, v{K0}, v{K0+1}")
    a(f"v_cvt_pk_bf16_f32 v{v_kf+1}, v{K0+2}, v{K0+3}")
    a(f"v_cvt_pk_bf16_f32 v{v_kf+2}, v{K1}, v{K1+1}")
    a(f"v_cvt_pk_bf16_f32 v{v_kf+3}, v{K1+2}, v{K1+3}")
    a("s_waitcnt vmcnt(0)")
    a(f"v_mfma_f32_16x16x32_bf16 {vr(v_s+4,4)}, {vr(v_ktk,4)}, {vr(v_qf,4)}, 0")
    a(f"s_cmp_lg_u32 s{s_w}, 3")
    a(f"s_cbranch_scc1 {name}_nopg")
    a(f"v_mov_b32 v{v_t}, s{s_step}")
    a(f"v_mov_b32 v{v_t2}, 0")
    a("s_mov_b64 exec, 1")
    a(f"global_store_dword v{v_t2}, v{v_t}, s[{S_PG}:{S_PG+1}] sc1")
    a("s_mov_b64 exec, -1")
    a.label(f"{name}_nopg")
    a(f"v_mfma_f32_16x16x32_bf16 {vr(v_s+8,4)}, {vr(v_ktk+4,4)}, {vr(v_qf,4)}, 0")
    a(f"v_mfma_f32_16x16x32_bf16 {vr(v_s,4)}, {vr(v_kf,4)}, {vr(v_qf,4)}, 0")
    a(f"s_mov_b64 exec, s[{S_MG2}:{S_MG2+1}]")
    a(f"ds_write_b128 v{v_vpw}, {vr(VV,4)}")
    a(f"s_mov_b64 exec, s[{S_MN8}:{S_MN8+1}]")
    a(f"s_cmp_lg_u32 s{s_w}, s{s_j}")
    a(f"s_cbranch_scc1 {name}_nok")
    a(f"s_lshl_b32 s{s_t0}, s{s_step}, 16")
    a(f"s_add_u32 s{S_TB}, s{S_KM}, s{s_t0}")
    a(f"s_addc_u32 s{S_TB+1}, s{S_KM+1}, 0")
    a(f"global_store_dwordx2 v{v_km}, {vr(v_kf,2)}, s[{S_TB}:{S_TB+1}] sc1")
    a(f"global_store_dwordx2 v{v_km}, {vr(v_kf+2,2)}, s[{S_TB}:{S_TB+1}] offset:32 sc1")
    a.label(f"{name}_nok")
    a("s_nop 7")
    a(f"ds_write_b128 v{v_spw}, {vr(v_s+4,4)} offset:64")
    a(f"ds_write_b128 v{v_spw}, {vr(v_s+8,4)} offset:128")
    a(f"ds_write_b128 v{v_spw}, {vr(v_s,4)}")
    a("s_mov_b64 exec, -1")
    a("s_waitcnt lgkmcnt(0)")
    a("s_barrier")
    stamp(4)
    B = v_big
    for tv in range(2):
        for kh in range(2):
            a(f"ds_read_b128 {vr(F + (tv*2+kh)*4, 4)}, v{v_vpr} offset:{(kh*2+tv)*512}")
    for wv_ in range(4):
        for t in range(3):
            dst = v_s + 4 * t if wv_ == 0 else v_stmp + ((wv_ - 1) * 3 + t) * 4
            a(f"ds_read_b128 {vr(dst, 4)}, v{v_spr} offset:{wv_*8*SPSTRIDE + t*64}")
    a("s_waitcnt lgkmcnt(12)")
    for tv in range(2):
        for r in range(4):
            a(f"v_add_f32 v{F + tv*8 + r}, v{F + tv*8 + r}, v{F + tv*8 + 4 + r}")
        a(f"v_cvt_pk_bf16_f32 v{v_vf + 2*tv}, v{F + tv*8}, v{F + tv*8 + 1}")
        a(f"v_cvt_pk_bf16_f32 v{v_vf + 2*tv + 1}, v{F + tv*8 + 2}, v{F + tv*8 + 3}")
    a(f"s_cmp_lg_u32 s{s_w}, 0")
    a(f"s_cbranch_scc1 {name}_nov")
    a(f"s_lshl_b32 s{s_t0}, s{s_step}, 16")
    a(f"s_add_u32 s{S_TB}, s{S_VM}, s{s_t0}")
    a(f"s_addc_u32 s{S_TB+1}, s{S_VM+1}, 0")
    a(f"s_mov_b64 exec, s[{S_MG2}:{S_MG2+1}]")
    a(f"global_store_dwordx2 v{v_vm}, {vr(v_vf,2)}, s[{S_TB}:{S_TB+1}] sc1")
    a(f"global_store_dwordx2 v{v_vm}, {vr(v_vf+2,2)}, s[{S_TB}:{S_TB+1}] offset:256 sc1")
    a("s_mov_b64 exec, -1")
    a.label(f"{name}_nov")
    a(f"s_cmp_ge_u32 s{s_step}, {nsteps-1}")
    a(f"s_cbranch_scc1 {name}_fin")
    a("s_waitcnt lgkmcnt(0)")
    T = v_stmp
    for i in range(12):
        a(f"v_add_f32 v{T+i}, v{T+i}, v{T+12+i}")
        a(f"v_add_f32 v{v_s+i}, v{v_s+i}, v{T+24+i}")
    for i in range(12):
        a(f"v_add_f32 v{v_s+i}, v{v_s+i}, v{T+i}")
    m = v_t; m2 = v_t2
    a(f"v_max3_f32 v{m}, v{v_s}, v{v_s+1}, v{v_s+2}")
    a(f"v_max3_f32 v{m2}, v{v_s+3}, v{v_s+4}, v{v_s+5}")
    a(f"v_max3_f32 v{m}, v{v_s+6}, v{v_s+7}, v{m}")
    a(f"v_max3_f32 v{m2}, v{v_s+8}, v{v_s+9}, v{m2}")
    a(f"v_max3_f32 v{m}, v{v_s+10}, v{v_s+11}, v{m}")
    a(f"v_max_f32 v{m}, v{m}, v{m2}")
    a(f"v_mov_b32 v{m2}, v{m}")
    a("s_nop 1")
    a(f"v_permlane16_swap_b32 v{m}, v{m2}")
    a(f"v_max_f32 v{m}, v{m}, v{m2}")
    a(f"v_mov_b32 v{m2}, v{m}")
    a("s_nop 1")
    a(f"v_permlane32_swap_b32 v{m}, v{m2}")
    a(f"v_max_f32 v{m}, v{m}, v{m2}")
    a(f"v_mul_f32 v{m}, s{s_c}, v{m}")
    for i in range(12):
        a(f"v_fma_f32 v{v_s+i}, v{v_s+i}, s{s_c}, -v{m}")
    for i in range(12):
        a(f"v_exp_f32 v{v_s+i}, v{v_s+i}")
    a("s_nop 0")
    for i in range(4):
        a(f"v_cndmask_b32 v{v_s+i}, 0, v{v_s+i}, s[{S_MG2}:{S_MG2+1}]")
    a(f"v_add_f32 v{m}, v{v_s}, v{v_s+1}")
    a(f"v_add_f32 v{m2}, v{v_s+2}, v{v_s+3}")
    for i in range(4, 12, 2):
        a(f"v_add_f32 v{m}, v{m}, v{v_s+i}")
        a(f"v_add_f32 v{m2}, v{m2}, v{v_s+i+1}")
    a(f"v_add_f32 v{m}, v{m}, v{m2}")
    a(f"v_mov_b32 v{m2}, v{m}")
    a("s_nop 1")
    a(f"v_permlane16_swap_b32 v{m}, v{m2}")
    a(f"v_add_f32 v{m}, v{m}, v{m2}")
    a(f"v_mov_b32 v{m2}, v{m}")
    a("s_nop 1")
    a(f"v_permlane32_swap_b32 v{m}, v{m2}")
    a(f"v_add_f32 v{m}, v{m}, v{m2}")
    a(f"v_rcp_f32 v{m}, v{m}")
    a("s_nop 0")
    for i in range(12):
        a(f"v_mul_f32 v{v_s+i}, v{v_s+i}, v{m}")
    for i in range(6):
        a(f"v_cvt_pk_bf16_f32 v{v_p+i}, v{v_s+2*i}, v{v_s+2*i+1}")
    a("s_nop 1")
    stamp(5)
    for tv in range(2):
        O = Q0 + 4 * tv
        a(f"v_mfma_f32_16x16x16_bf16 {vr(O,4)}, {vr(v_vf+2*tv,2)}, {vr(v_p,2)}, 0")
    for t in (1, 2):
        for tv in range(2):
            O = Q0 + 4 * tv
            a(f"v_mfma_f32_16x16x16_bf16 {vr(O,4)}, {vr(v_vtk + tv*4 + (t-1)*2,2)}, {vr(v_p+2*t,2)}, {vr(O,4)}")
    a("s_nop 7")
    a("s_nop 1")
    a(f"v_cvt_pk_bf16_f32 v{v_qf}, v{Q0}, v{Q0+1}")
    a(f"v_cvt_pk_bf16_f32 v{v_qf+1}, v{Q0+2}, v{Q0+3}")
    a(f"v_cvt_pk_bf16_f32 v{v_qf+2}, v{Q1}, v{Q1+1}")
    a(f"v_cvt_pk_bf16_f32 v{v_qf+3}, v{Q1+2}, v{Q1+3}")
    a(f"s_and_b32 s{s_t0}, s{s_step}, {RING-1}")
    a(f"s_mul_i32 s{s_t0}, s{s_t0}, {80*32768}")
    a(f"s_add_u32 s{S_PB}, s{S_PT}, s{s_t0}")
    a(f"s_addc_u32 s{S_PB+1}, s{S_PT+1}, 0")
    for t in range(10):
        a(f"v_mfma_f32_16x16x32_bf16 {vr(B+4*t,4)}, {wo(t)}, {vr(v_qf,4)}, 0")
    a(f"s_mov_b64 exec, s[{S_MN8}:{S_MN8+1}]")
    for t in range(10):
        if t == 0:
            a("s_nop 0")
            a(f"global_store_dwordx4 v{v_part}, {vr(B,4)}, s[{S_PB}:{S_PB+1}] sc1")
        else:
            tr = v_t if t % 2 else v_t2
            a(f"v_add_u32 v{tr}, {t*65536}, v{v_part}")
            a(f"global_store_dwordx4 v{tr}, {vr(B+4*t,4)}, s[{S_PB}:{S_PB+1}] sc1")
    a("s_mov_b64 exec, -1")
    stamp(6)
    a("s_cmp_ge_u32 s2, 80")
    a(f"s_cbranch_scc1 {name}_next")
    a(f"s_lshl_b32 s{s_t0}, s2, 15")
    a(f"s_add_u32 s{S_TB}, s{S_PB}, s{s_t0}")
    a(f"s_addc_u32 s{S_TB+1}, s{S_PB+1}, 0")
    a(f"s_add_u32 s{S_TB2}, s{S_TB}, 16384")
    a(f"s_addc_u32 s{S_TB2+1}, s{S_TB+1}, 0")
    a(f"s_mov_b32 s{s_spin}, 0")
    a(f"v_add_u32 v{v_t3}, 8192+4096, v{v_g0}")
    if PRESLEEP: a(f"s_sleep {PRESLEEP}")
    a.label(f"{name}_rpoll")
    offs = [v_g0, v_g1, v_g2, v_t3]
    for i in range(8):
        sb = S_TB if i < 4 else S_TB2
        a(f"global_load_dwordx4 {vr(B+4*i,4)}, v{offs[i%4]}, s[{sb}:{sb+1}] sc1")
    a(f"s_add_u32 s{s_spin}, s{s_spin}, 1")
    a("s_waitcnt vmcnt(0)")
    a(f"v_max3_u32 v{v_t}, v{B}, v{B+1}, v{B+2}")
    a(f"v_max3_u32 v{v_t2}, v{B+3}, v{B+4}, v{B+5}")
    for i in range(6, 30, 4):
        a(f"v_max3_u32 v{v_t}, v{B+i}, v{B+i+1}, v{v_t}")
        a(f"v_max3_u32 v{v_t2}, v{B+i+2}, v{B+i+3}, v{v_t2}")
    a(f"v_max3_u32 v{v_t}, v{B+30}, v{B+31}, v{v_t}")
    a(f"v_max_u32 v{v_t}, v{v_t}, v{v_t2}")
    a(f"v_cmp_eq_u32 vcc, -1, v{v_t}")
    a(f"s_cmp_ge_u32 s{s_spin}, {SPIN_MAX}")
    a(f"s_cbranch_scc1 {name}_rdone")
    if POLLSLEEP: a(f"s_sleep {POLLSLEEP}")
    a(f"s_cbranch_vccnz {name}_rpoll")
    a.label(f"{name}_rdone")
    stamp(7)
    for lvl in (16, 8, 4):
        for i in range(lvl):
            a(f"v_add_f32 v{B+i}, v{B+i}, v{B+lvl+i}")
    a(f"ds_write_b128 v{v_redw}, {vr(B,4)}")
    a("s_waitcnt lgkmcnt(0)")
    a("s_barrier")
    a(f"s_cmp_lg_u32 s{s_w}, 0")
    a(f"s_cbranch_scc1 {name}_rclr")
    for i in range(16):
        a(f"ds_read_b64 {vr(B+2*i,2)}, v{v_redr} offset:{i*256}")
    a(f"s_add_u32 s{s_t0}, s{s_step}, 1")
    a(f"s_mul_i32 s{s_t0}, s{s_t0}, {RC*10240}")
    a(f"s_add_u32 s{S_TB2}, s{S_MB}, s{s_t0}")
    a(f"s_addc_u32 s{S_TB2+1}, s{S_MB+1}, 0")
    a("s_waitcnt lgkmcnt(0)")
    for lvl in (16, 8, 4, 2):
        for i in range(lvl):
            a(f"v_add_f32 v{B+i}, v{B+i}, v{B+lvl+i}")
    a(f"v_cvt_pk_bf16_f32 v{B}, v{B}, v{B+1}")
    a("s_mov_b32 exec_lo, -1")
    a("s_mov_b32 exec_hi, 0")
    for c in range(RC):
        if c * 10240 < 4096:
            a(f"global_store_dword v{v_pub}, v{B}, s[{S_TB2}:{S_TB2+1}] offset:{c*10240} sc1")
        else:
            a(f"v_add_u32 v{v_t}, {c*10240}, v{v_pub}")
            a(f"global_store_dword v{v_t}, v{B}, s[{S_TB2}:{S_TB2+1}] sc1")
    a("s_mov_b64 exec, -1")
    a.label(f"{name}_rclr")
    stamp(8)
    a(f"s_add_u32 s{S_TB2}, s{S_TB}, 16384")
    a(f"s_addc_u32 s{S_TB2+1}, s{S_TB+1}, 0")
    for i in range(4):
        a(f"v_mov_b32 v{B+36+i}, -1")
    for i in range(8):
        sb = S_TB if i < 4 else S_TB2
        a(f"global_store_dwordx4 v{offs[i%4]}, {vr(B+36,4)}, s[{sb}:{sb+1}] sc1")
    a.label(f"{name}_next")
    if prof:
        stamp(9)
        a(f"s_cmp_lg_u32 s{s_w}, 0")
        a(f"s_cbranch_scc1 {name}_nost")
        a(f"s_lshl_b32 s{s_t0}, s2, 6")
        a(f"s_add_u32 s{s_t0}, s{s_t0}, s{s_step}")
        a(f"s_lshl_b32 s{s_t0}, s{s_t0}, 7")
        a(f"s_add_u32 s{s_t0}, s{s_t0}, {120*MB}")
        a(f"s_add_u32 s{S_TB}, s{S_WS}, s{s_t0}")
        a(f"s_addc_u32 s{S_TB+1}, s{S_WS+1}, 0")
        a(f"v_mov_b32 v{v_t3}, 0")
        for i in range(NST):
            a(f"v_mov_b32 v{v_t}, s{64+2*i}")
            a(f"global_store_dword v{v_t3}, v{v_t}, s[{S_TB}:{S_TB+1}] offset:{i*4}")
            a("s_nop 2")
        a.label(f"{name}_nost")
    a(f"s_add_u32 s{s_step}, s{s_step}, 1")
    a(f"s_branch {name}_loop")
    a.label(f"{name}_fin")
    a("s_waitcnt vmcnt(0) lgkmcnt(0)")
    a("s_barrier")
    a(f"s_cmp_lg_u32 s{s_w}, 0")
    a(f"s_cbranch_scc1 {name}_end")
    a(f"v_mov_b32 v{v_t}, {nsteps}")
    a(f"v_mov_b32 v{v_t2}, 0")
    a("s_mov_b64 exec, 1")
    a(f"global_store_dword v{v_t2}, v{v_t}, s[{S_PG}:{S_PG+1}] sc1")
    a("s_waitcnt vmcnt(0)")
    a.label(f"{name}_end")
    a("s_endpgm")
```

```python
from gen_common import *
S_WID = 100
S_DBGW = 98
WS_B = 104 * MB
WS_G = 108 * MB
WS_PROG = 112 * MB
WSPIN = 1 << 18

def poll_dbg(a, lab, s_off, shift, target, v_t, v_t2, s_a, s_b, s_w, sleep=8):
    a(f"s_cmp_lg_u32 s{s_w}, 0")
    a(f"s_cbranch_scc1 {lab}_d")
    a(f"v_mov_b32 v{v_t2}, s{s_off}")
    a(f"s_mov_b32 s{s_b}, 0")
    a.label(f"{lab}_l")
    a(f"global_load_dword v{v_t}, v{v_t2}, s[{S_DBGW}:{S_DBGW+1}] sc1")
    a(f"s_add_u32 s{s_b}, s{s_b}, 1")
    a("s_waitcnt vmcnt(0)")
    a(f"v_readfirstlane_b32 s{s_a}, v{v_t}")
    if isinstance(shift, int):
        a(f"s_lshr_b32 s{s_a}, s{s_a}, {shift}")
    else:
        a(f"s_lshr_b32 s{s_a}, s{s_a}, s{shift[0]}")
    a(f"s_and_b32 s{s_a}, s{s_a}, 255")
    a(f"s_cmp_eq_u32 s{s_a}, {target}")
    a(f"s_cbranch_scc1 {lab}_d")
    a(f"s_cmp_ge_u32 s{s_b}, {WSPIN}")
    a(f"s_cbranch_scc1 {lab}_d")
    a(f"s_sleep {sleep}")
    a(f"s_branch {lab}_l")
    a.label(f"{lab}_d")
    a("s_barrier")

def signal_dbg(a, lab, s_off, val, v_a, v_b, s_w):
    a(f"s_cmp_lg_u32 s{s_w}, 0")
    a(f"s_cbranch_scc1 {lab}_n")
    if isinstance(val, int):
        a(f"v_mov_b32 v{v_a}, {val}")
    else:
        a(f"v_mov_b32 v{v_a}, s{val[0]}")
    a(f"v_mov_b32 v{v_b}, s{s_off}")
    a("s_mov_b64 exec, 1")
    a(f"global_atomic_add v{v_b}, v{v_a}, s[{S_DBGW}:{S_DBGW+1}] sc1")
    a("s_mov_b64 exec, -1")
    a.label(f"{lab}_n")

def wstamp(a, lab, idx):
    a("s_load_dwordx2 s[90:91], s[0:1], 112")
    a("s_memrealtime s[92:93]")
    a(f"s_lshl_b32 s94, s{S_WID}, 8")
    if isinstance(idx, int):
        a(f"s_add_u32 s94, s94, {121*MB + idx*4}")
    else:
        a(f"s_lshr_b32 s95, s{idx[0]}, 7")
        a(f"s_lshl_b32 s95, s95, 2")
        a(f"s_add_u32 s94, s94, s95")
        a(f"s_add_u32 s94, s94, {121*MB + 16}")
    a("s_waitcnt lgkmcnt(0)")
    a("v_mov_b32 v254, s94")
    a("v_mov_b32 v255, s92")
    a("s_mov_b64 s[92:93], exec")
    a("s_mov_b64 exec, 1")
    a("global_store_dword v254, v255, s[90:91]")
    a("s_mov_b64 exec, s[92:93]")

def wstamp2(a, sidx, div):
    a("s_load_dwordx2 s[90:91], s[0:1], 112")
    a("s_memrealtime s[92:93]")
    a(f"s_lshl_b32 s94, s{S_WID}, 8")
    a(f"s_mul_i32 s95, s{sidx}, {65536 // div + 1}")
    a("s_lshr_b32 s95, s95, 16")
    a("s_lshl_b32 s95, s95, 2")
    a("s_add_u32 s94, s94, s95")
    a(f"s_add_u32 s94, s94, {121*MB + 16}")
    a("s_waitcnt lgkmcnt(0)")
    a("v_mov_b32 v254, s94")
    a("v_mov_b32 v255, s92")
    a("s_mov_b64 exec, 1")
    a("global_store_dword v254, v255, s[90:91]")
    a("s_mov_b64 exec, -1")
```

```python
from gen_common import *
from m_sync import *
import struct
def f32bits(x):
    return struct.unpack("<I", struct.pack("<f", x))[0]
SCALE_LOG2E = 128 ** -0.5 * 1.4426950408889634
NSEGJ = 28

def gen_clear_body(a, name, nwg=128):
    v_t, v_e = 1, 4
    S_WS, S_OB, s_t0, s_w = 6, 8, 10, 3
    a("s_load_dwordx2 s[6:7], s[0:1], 112")
    a(f"s_load_dwordx2 s[{S_DBGW}:{S_DBGW+1}], s[0:1], 104")
    a(f"v_lshrrev_b32 v{v_t}, 6, v0")
    for i in range(4):
        a(f"v_mov_b32 v{v_e+i}, -1")
    a(f"v_readfirstlane_b32 s{s_w}, v{v_t}")
    a("s_waitcnt lgkmcnt(0)")
    for (base, nbytes) in ((WS_MEMB, MEMB_BYTES), (WS_PART, PART_BYTES)):
        per = nbytes // (nwg * 4096)
        assert per * nwg * 4096 == nbytes
        a(f"s_mul_i32 s{s_t0}, s{S_WID}, {per*4096}")
        a(f"s_add_u32 s{s_t0}, s{s_t0}, {base}")
        a(f"s_add_u32 s{S_OB}, s{S_WS}, s{s_t0}")
        a(f"s_addc_u32 s{S_OB+1}, s{S_WS+1}, 0")
        a(f"v_lshlrev_b32 v{v_t}, 4, v0")
        for i in range(per):
            a(f"global_store_dwordx4 v{v_t}, {vr(v_e,4)}, s[{S_OB}:{S_OB+1}] sc1")
            a(f"v_add_u32 v{v_t}, 4096, v{v_t}")
    a(f"s_lshl_b32 s{s_t0}, s{S_WID}, 2")
    a(f"s_add_u32 s{s_t0}, s{s_t0}, {WS_PROG}")
    a(f"s_add_u32 s{S_OB}, s{S_WS}, s{s_t0}")
    a(f"s_addc_u32 s{S_OB+1}, s{S_WS+1}, 0")
    a(f"v_mov_b32 v{v_t}, 0")
    a(f"s_cmp_lg_u32 s{s_w}, 0")
    a(f"s_cbranch_scc1 {name}_np")
    a("s_mov_b64 exec, 1")
    a(f"global_store_dword v{v_t}, v{v_t}, s[{S_OB}:{S_OB+1}] sc1")
    a("s_mov_b64 exec, -1")
    a.label(f"{name}_np")
    a("s_waitcnt vmcnt(0)")
    a("s_barrier")
    a(f"s_mov_b32 s{s_t0}, 64")
    signal_dbg(a, name + "_sg", s_t0, 1, v_e, v_e + 1, s_w)

def gen_gate_body(a, name):
    v_l, v_t, v_t2, v_o = 1, 2, 3, 4
    v_x = 8; v_gw = 16; v_r = 24; v_res = 30
    s_w, s_tok, s_i, s_t0 = 3, 4, 5, 14
    a("s_load_dwordx2 s[6:7], s[0:1], 0")
    a("s_load_dwordx2 s[8:9], s[0:1], 88")
    a("s_load_dwordx2 s[12:13], s[0:1], 112")
    a(f"v_lshrrev_b32 v{v_t}, 6, v0")
    a(f"v_and_b32 v{v_l}, 63, v0")
    a(f"v_readfirstlane_b32 s{s_w}, v{v_t}")
    a(f"s_sub_u32 s{s_tok}, s{S_WID}, 80")
    a(f"s_lshl_b32 s{s_tok}, s{s_tok}, 2")
    a(f"s_add_u32 s{s_tok}, s{s_tok}, s{s_w}")
    a(f"s_lshl_b32 s{s_tok}, s{s_tok}, 5")
    a(f"v_lshlrev_b32 v{v_o}, 2, v{v_l}")
    a("s_waitcnt lgkmcnt(0)")
    for i in range(5):
        a(f"global_load_dword v{v_gw+i}, v{v_o}, s[8:9] offset:{i*256}")
    a(f"s_mul_i32 s{s_t0}, s{s_tok}, 1280")
    a(f"s_add_u32 s6, s6, s{s_t0}"); a("s_addc_u32 s7, s7, 0")
    a(f"s_mov_b32 s{s_i}, 0")
    a(f"v_mov_b32 v{v_res}, 0")
    a.label(f"{name}_l")
    for i in range(5):
        a(f"global_load_dword v{v_x+i}, v{v_o}, s[6:7] offset:{i*256}")
    a("s_add_u32 s6, s6, 1280"); a("s_addc_u32 s7, s7, 0")
    a("s_waitcnt vmcnt(0)")
    a(f"v_mov_b32 v{v_t}, 0")
    for i in range(5):
        a(f"v_lshlrev_b32 v{v_r}, 16, v{v_x+i}")
        a(f"v_lshlrev_b32 v{v_r+1}, 16, v{v_gw+i}")
        a(f"v_and_b32 v{v_r+2}, 0xffff0000, v{v_x+i}")
        a(f"v_and_b32 v{v_r+3}, 0xffff0000, v{v_gw+i}")
        a(f"v_mul_f32 v{v_r}, v{v_r}, v{v_r+1}")
        a(f"v_mul_f32 v{v_r+2}, v{v_r+2}, v{v_r+3}")
        a(f"v_cvt_pk_bf16_f32 v{v_r}, v{v_r}, v{v_r+2}")
        a(f"v_lshlrev_b32 v{v_r+1}, 16, v{v_r}")
        a(f"v_and_b32 v{v_r}, 0xffff0000, v{v_r}")
        a(f"v_add_f32 v{v_t}, v{v_t}, v{v_r+1}")
        a(f"v_add_f32 v{v_t}, v{v_t}, v{v_r}")
    for off in (0x041F, 0x081F, 0x101F, 0x201F):
        a(f"ds_swizzle_b32 v{v_t2}, v{v_t} offset:{off}")
        a("s_waitcnt lgkmcnt(0)")
        a(f"v_add_f32 v{v_t}, v{v_t}, v{v_t2}")
    for op in ("v_permlane16_swap_b32", "v_permlane32_swap_b32"):
        a(f"v_mov_b32 v{v_t2}, v{v_t}")
        a("s_nop 1")
        a(f"{op} v{v_t}, v{v_t2}")
        a(f"v_add_f32 v{v_t}, v{v_t}, v{v_t2}")
    a(f"v_cvt_pk_bf16_f32 v{v_t}, v{v_t}, v{v_t}")
    a(f"v_lshlrev_b32 v{v_t}, 16, v{v_t}")
    a(f"v_mul_f32 v{v_t}, 0x{f32bits(-1.4426950408889634):08x}, v{v_t}")
    a(f"v_exp_f32 v{v_t}, v{v_t}")
    a("s_nop 0")
    a(f"v_add_f32 v{v_t}, 1.0, v{v_t}")
    a(f"v_rcp_f32 v{v_t}, v{v_t}")
    a("s_nop 0")
    a(f"v_cvt_pk_bf16_f32 v{v_t}, v{v_t}, v{v_t}")
    a(f"v_lshlrev_b32 v{v_t}, 16, v{v_t}")
    a(f"v_cmp_eq_u32 vcc, s{s_i}, v{v_l}")
    a(f"v_cndmask_b32 v{v_res}, v{v_res}, v{v_t}, vcc")
    a(f"s_add_u32 s{s_i}, s{s_i}, 1")
    a(f"s_cmp_lt_u32 s{s_i}, 32")
    a(f"s_cbranch_scc1 {name}_l")
    a(f"s_lshl_b32 s{s_t0}, s{s_tok}, 2")
    a(f"s_add_u32 s{s_t0}, s{s_t0}, {WS_G}")
    a(f"s_add_u32 s12, s12, s{s_t0}"); a("s_addc_u32 s13, s13, 0")
    a("s_mov_b32 exec_lo, -1")
    a("s_mov_b32 exec_hi, 0")
    a(f"global_store_dword v{v_o}, v{v_res}, s[12:13] sc1")
    a("s_mov_b64 exec, -1")
    a("s_waitcnt vmcnt(0)")
    a("s_barrier")
    a(f"s_sub_u32 s{s_t0}, s{S_WID}, 80")
    a(f"s_lshl_b32 s{s_t0}, s{s_t0}, 2")
    signal_dbg(a, name + "_sg", s_t0, 1 << 24, v_t, v_t2, s_w)

def gen_tail_body(a, name, nwg=128, TL=0, ONC=0):
    OSC = "" if ONC else " sc1"
    V = Alloc(1, 256)
    v_n = V.get("n"); v_g = V.get("g"); v_l = V.get("l")
    v_t = V.get("t"); v_t2 = V.get("t2"); v_t3 = V.get("t3"); v_t4 = V.get("t4")
    v_qo = V.get("qo"); v_mo = V.get("mo"); v_vo = V.get("vo"); v_vmo = V.get("vmo")
    v_bo = V.get("bo"); v_tr = V.get("tr"); v_rw = V.get("rw"); v_rr = V.get("rr"); v_oo = V.get("oo")
    v_bb = V.get("bb", 2, 2); v_gg = V.get("gg")
    base = (V.next + 3) // 4 * 4
    v_q = base; v_k = v_q + 32; v_v = v_k + 48; v_s = v_v + 48; v_p = v_s + 20
    v_o = v_q
    v_A = base; v_acc = v_A + 192
    assert v_acc + 16 <= 256 and v_p + 10 <= 256
    s_w, s_s, s_h = 3, 4, 5
    S_WS, S_B, S_B2 = 6, 8, 10
    s_t0, s_t1, s_c, s_t2 = 12, 13, 14, 15
    S_MG2, S_D = 16, 18
    s_e, s_i, s_spin, s_sh = 26, 27, 28, 29
    S_OUT, S_WO, SRD = 30, 32, 36
    s_so = 40; s_lb = 41
    a("s_load_dwordx2 s[6:7], s[0:1], 112")
    a("s_load_dwordx2 s[30:31], s[0:1], 96")
    a("s_load_dwordx2 s[32:33], s[0:1], 40")
    a(f"v_lshrrev_b32 v{v_t}, 6, v0")
    a(f"v_and_b32 v{v_l}, 63, v0")
    a(f"v_readfirstlane_b32 s{s_w}, v{v_t}")
    a(f"v_and_b32 v{v_n}, 15, v0")
    a(f"v_lshrrev_b32 v{v_g}, 4, v{v_l}")
    a(f"v_cmp_gt_u32 s[{S_MG2}:{S_MG2+1}], 2, v{v_g}")
    a(f"v_lshlrev_b32 v{v_t}, 2, v{v_g}")
    for r in range(4):
        a(f"v_add_u32 v{v_t2}, {r}, v{v_t}")
        a(f"v_cmp_le_u32 s[{S_D+2*r}:{S_D+2*r+1}], v{v_t2}, v{v_n}")
    a(f"v_lshlrev_b32 v{v_qo}, 13, v{v_n}")
    a(f"v_lshl_add_u32 v{v_qo}, v{v_g}, 4, v{v_qo}")
    a(f"v_and_b32 v{v_t}, 7, v{v_n}")
    a(f"v_lshlrev_b32 v{v_mo}, 13, v{v_t}")
    a(f"v_lshl_add_u32 v{v_mo}, v{v_g}, 4, v{v_mo}")
    a(f"v_lshlrev_b32 v{v_vo}, 12, v{v_n}")
    a(f"v_lshl_add_u32 v{v_vo}, v{v_g}, 3, v{v_vo}")
    a(f"v_and_b32 v{v_t}, 1, v{v_g}")
    a(f"v_lshlrev_b32 v{v_vmo}, 4, v{v_n}")
    a(f"v_lshl_add_u32 v{v_vmo}, v{v_t}, 3, v{v_vmo}")
    a(f"s_mov_b32 s{s_c}, {f32bits(SCALE_LOG2E)}")
    a(f"v_lshrrev_b32 v{v_t}, 2, v{v_l}")
    a(f"v_mul_u32_u24 v{v_bo}, 1280, v{v_t}")
    a(f"v_and_b32 v{v_t2}, 3, v{v_l}")
    a(f"v_lshl_add_u32 v{v_bo}, v{v_t2}, 4, v{v_bo}")
    a(f"v_lshrrev_b32 v{v_t}, 2, v{v_n}")
    a(f"v_lshl_add_u32 v{v_t}, v{v_g}, 3, v{v_t}")
    a(f"v_lshlrev_b32 v{v_tr}, 6, v{v_t}")
    a(f"v_lshl_add_u32 v{v_tr}, v{v_t2}, 3, v{v_tr}")
    a(f"s_lshl_b32 s{s_lb}, s{s_w}, 15")
    a(f"v_add_u32 v{v_tr}, s{s_lb}, v{v_tr}")
    a(f"v_lshlrev_b32 v{v_rw}, 4, v{v_l}")
    a(f"s_lshl_b32 s{s_t0}, s{s_w}, 10")
    a(f"v_add_u32 v{v_rr}, s{s_t0}, v{v_rw}")
    a(f"v_add_u32 v{v_rw}, s{s_lb}, v{v_rw}")
    a(f"v_mul_u32_u24 v{v_oo}, 1280, v{v_n}")
    a(f"v_lshl_add_u32 v{v_oo}, v{v_g}, 3, v{v_oo}")
    a(f"s_lshr_b32 s{s_t0}, s{s_w}, 1")
    a(f"s_mul_i32 s{s_t0}, s{s_t0}, {16*1280}")
    a(f"s_and_b32 s{s_t1}, s{s_w}, 1")
    a(f"s_lshl_b32 s{s_t1}, s{s_t1}, 5")
    a(f"s_add_u32 s{s_t0}, s{s_t0}, s{s_t1}")
    a(f"v_add_u32 v{v_oo}, s{s_t0}, v{v_oo}")
    a("s_waitcnt lgkmcnt(0)")
    a(f"s_mov_b32 s{SRD}, s{S_WO}")
    a(f"s_and_b32 s{SRD+1}, s{S_WO+1}, 0xffff")
    a(f"s_mov_b32 s{SRD+2}, {4096*1280}")
    a(f"s_mov_b32 s{SRD+3}, 0x00020000")
    a(f"s_mov_b32 s{s_t0}, 64")
    poll_dbg(a, name + "_cw", s_t0, 0, 128, v_t, v_t2, s_t1, s_t2, s_w)
    a(f"s_cmp_lt_u32 s{S_WID}, 80")
    a(f"s_cbranch_scc1 {name}_wo_init")
    a(f"s_sub_u32 s{s_e}, s{S_WID}, 80")
    a.label(f"{name}_loop")
    a(f"s_lshr_b32 s{s_s}, s{s_e}, 3")
    a(f"s_and_b32 s{s_i}, s{s_e}, 7")
    a(f"s_lshr_b32 s{s_t0}, s{s_s}, 2")
    a(f"s_lshl_b32 s{s_t0}, s{s_t0}, 2")
    poll_dbg(a, name + "_a1", s_t0, 0, 64, v_t, v_t2, s_t1, s_t2, s_w)
    poll_dbg(a, name + "_a2", s_t0, 8, 32, v_t, v_t2, s_t1, s_t2, s_w)
    a(f"s_cmp_lg_u32 s{s_w}, 0")
    a(f"s_cbranch_scc1 {name}_pd")
    a(f"s_lshl_b32 s{s_t0}, s{s_i}, 6")
    a(f"s_add_u32 s{s_t0}, s{s_t0}, {WS_PROG}")
    a(f"s_add_u32 s{S_B}, s{S_WS}, s{s_t0}")
    a(f"s_addc_u32 s{S_B+1}, s{S_WS+1}, 0")
    a(f"v_lshlrev_b32 v{v_t2}, 2, v{v_n}")
    a(f"s_mov_b32 s{s_spin}, 0")
    a.label(f"{name}_pl")
    a(f"global_load_dword v{v_t}, v{v_t2}, s[{S_B}:{S_B+1}] sc1")
    a(f"s_add_u32 s{s_spin}, s{s_spin}, 1")
    a("s_waitcnt vmcnt(0)")
    a(f"v_cmp_ge_u32 vcc, s{s_s}, v{v_t}")
    a(f"s_cmp_ge_u32 s{s_spin}, {WSPIN}")
    a(f"s_cbranch_scc1 {name}_pd")
    a(f"s_cbranch_vccz {name}_pd")
    a("s_sleep 8")
    a(f"s_branch {name}_pl")
    a.label(f"{name}_pd")
    a("s_barrier")
    a(f"s_lshl_b32 s{s_h}, s{s_i}, 2")
    a(f"s_add_u32 s{s_h}, s{s_h}, s{s_w}")
    a(f"s_lshl_b32 s{s_t0}, s{s_s}, 18")
    a(f"s_lshl_b32 s{s_t1}, s{s_h}, 8")
    a(f"s_add_u32 s{s_t0}, s{s_t0}, s{s_t1}")
    a(f"s_add_u32 s{S_B}, s{S_WS}, s{s_t0}")
    a(f"s_addc_u32 s{S_B+1}, s{S_WS+1}, 0")
    a(f"s_add_u32 s{S_B2}, s{S_B}, {WS_K}")
    a(f"s_addc_u32 s{S_B2+1}, s{S_B+1}, 0")
    a(f"v_add_u32 v{v_t}, 0x20000, v{v_qo}")
    for qt in range(2):
        for ks in range(4):
            a(f"global_load_dwordx4 {vr(v_q + (qt*4+ks)*4, 4)}, v{v_qo if qt == 0 else v_t}, s[{S_B}:{S_B+1}] offset:{ks*64} sc1")
    for t in (1, 2):
        for ks in range(4):
            a(f"global_load_dwordx4 {vr(v_k + (t*4+ks)*4, 4)}, v{v_qo if t == 1 else v_t}, s[{S_B2}:{S_B2+1}] offset:{ks*64} sc1")
    a(f"s_lshl_b32 s{s_t0}, s{s_s}, 16")
    a(f"s_add_u32 s{s_t0}, s{s_t0}, s{s_t1}")
    a(f"s_add_u32 s{s_t0}, s{s_t0}, {WS_KMEM}")
    a(f"s_add_u32 s{S_B}, s{S_WS}, s{s_t0}")
    a(f"s_addc_u32 s{S_B+1}, s{S_WS+1}, 0")
    for ks in range(4):
        a(f"global_load_dwordx4 {vr(v_k + ks*4, 4)}, v{v_mo}, s[{S_B}:{S_B+1}] offset:{ks*64} sc1")
    a(f"s_lshl_b32 s{s_t0}, s{s_h}, 19")
    a(f"s_lshl_b32 s{s_t1}, s{s_s}, 6")
    a(f"s_add_u32 s{s_t0}, s{s_t0}, s{s_t1}")
    a(f"s_add_u32 s{s_t0}, s{s_t0}, {WS_VT}")
    a(f"s_add_u32 s{S_B}, s{S_WS}, s{s_t0}")
    a(f"s_addc_u32 s{S_B+1}, s{S_WS+1}, 0")
    for dt in range(8):
        if dt: a(f"v_add_u32 v{v_t}, {dt*65536}, v{v_vo}")
        for t in (1, 2):
            a(f"global_load_dwordx2 {vr(v_v + (dt*3+t)*2, 2)}, v{v_vo if dt == 0 else v_t}, s[{S_B}:{S_B+1}] offset:{(t-1)*32} sc1")
    a(f"s_lshl_b32 s{s_t0}, s{s_s}, 16")
    a(f"s_lshl_b32 s{s_t1}, s{s_h}, 11")
    a(f"s_add_u32 s{s_t0}, s{s_t0}, s{s_t1}")
    a(f"s_add_u32 s{s_t0}, s{s_t0}, {WS_VMEMT}")
    a(f"s_add_u32 s{S_B2}, s{S_WS}, s{s_t0}")
    a(f"s_addc_u32 s{S_B2+1}, s{S_WS+1}, 0")
    for dt in range(8):
        a(f"global_load_dwordx2 {vr(v_v + (dt*3)*2, 2)}, v{v_vmo}, s[{S_B2}:{S_B2+1}] offset:{dt*256} sc1")
    a("s_waitcnt vmcnt(24)")
    tiles = [(0, 0), (1, 0), (0, 1), (1, 1), (2, 1)]
    for ks in range(4):
        for i, (t, qt) in enumerate(tiles):
            acc = vr(v_s + 4*i, 4)
            a(f"v_mfma_f32_16x16x32_bf16 {acc}, {vr(v_k + (t*4+ks)*4,4)}, {vr(v_q + (qt*4+ks)*4,4)}, {'0' if ks == 0 else acc}")
    a("s_nop 7")
    a("s_nop 1")
    a(f"v_mov_b32 v{v_t4}, 0xff800000")
    for i in (1, 4):
        for r in range(4):
            a(f"v_cndmask_b32 v{v_s+4*i+r}, v{v_t4}, v{v_s+4*i+r}, s[{S_D+2*r}:{S_D+2*r+1}]")
    for qt, idx in ((0, [0, 1]), (1, [2, 3, 4])):
        regs = [v_s + 4*i + r for i in idx for r in range(4)]
        m = v_t; m2 = v_t2
        a(f"v_max3_f32 v{m}, v{regs[0]}, v{regs[1]}, v{regs[2]}")
        a(f"v_max3_f32 v{m2}, v{regs[3]}, v{regs[4]}, v{regs[5]}")
        a(f"v_max3_f32 v{m}, v{regs[6]}, v{regs[7]}, v{m}")
        if len(regs) > 8:
            a(f"v_max3_f32 v{m2}, v{regs[8]}, v{regs[9]}, v{m2}")
            a(f"v_max3_f32 v{m}, v{regs[10]}, v{regs[11]}, v{m}")
        a(f"v_max_f32 v{m}, v{m}, v{m2}")
        for op in ("v_permlane16_swap_b32", "v_permlane32_swap_b32"):
            a(f"v_mov_b32 v{m2}, v{m}")
            a("s_nop 1")
            a(f"{op} v{m}, v{m2}")
            a(f"v_max_f32 v{m}, v{m}, v{m2}")
        a(f"v_mul_f32 v{m}, s{s_c}, v{m}")
        for r in regs:
            a(f"v_fma_f32 v{r}, v{r}, s{s_c}, -v{m}")
        for r in regs:
            a(f"v_exp_f32 v{r}, v{r}")
        a("s_nop 0")
        for r in regs[:4]:
            a(f"v_cndmask_b32 v{r}, 0, v{r}, s[{S_MG2}:{S_MG2+1}]")
        a(f"v_add_f32 v{m}, v{regs[0]}, v{regs[1]}")
        a(f"v_add_f32 v{m2}, v{regs[2]}, v{regs[3]}")
        for i in range(4, len(regs), 2):
            a(f"v_add_f32 v{m}, v{m}, v{regs[i]}")
            a(f"v_add_f32 v{m2}, v{m2}, v{regs[i+1]}")
        a(f"v_add_f32 v{m}, v{m}, v{m2}")
        for op in ("v_permlane16_swap_b32", "v_permlane32_swap_b32"):
            a(f"v_mov_b32 v{m2}, v{m}")
            a("s_nop 1")
            a(f"{op} v{m}, v{m2}")
            a(f"v_add_f32 v{m}, v{m}, v{m2}")
        a(f"v_rcp_f32 v{m}, v{m}")
        a("s_nop 0")
        for r in regs:
            a(f"v_mul_f32 v{r}, v{r}, v{m}")
    for i in range(5):
        a(f"v_cvt_pk_bf16_f32 v{v_p+2*i}, v{v_s+4*i}, v{v_s+4*i+1}")
        a(f"v_cvt_pk_bf16_f32 v{v_p+2*i+1}, v{v_s+4*i+2}, v{v_s+4*i+3}")
    a("s_waitcnt vmcnt(0)")
    a("s_nop 0")
    for i, (t, qt) in enumerate(tiles):
        for dt in range(8):
            acc = vr(v_o + (qt*8+dt)*4, 4)
            a(f"v_mfma_f32_16x16x16_bf16 {acc}, {vr(v_v + (dt*3+t)*2,2)}, {vr(v_p+2*i,2)}, {'0' if t == 0 else acc}")
    a(f"s_lshl_b32 s{s_t0}, s{s_s}, 18")
    a(f"s_lshl_b32 s{s_t1}, s{s_h}, 8")
    a(f"s_add_u32 s{s_t0}, s{s_t0}, s{s_t1}")
    a(f"s_add_u32 s{s_t0}, s{s_t0}, {WS_O}")
    a(f"s_add_u32 s{S_B}, s{S_WS}, s{s_t0}")
    a(f"s_addc_u32 s{S_B+1}, s{S_WS+1}, 0")
    a(f"v_lshlrev_b32 v{v_t}, 13, v{v_n}")
    a(f"v_lshl_add_u32 v{v_t}, v{v_g}, 3, v{v_t}")
    a(f"v_add_u32 v{v_t2}, 0x20000, v{v_t}")
    a("s_nop 7")
    for qt in range(2):
        for dt in range(8):
            ac = v_o + (qt*8+dt)*4
            a(f"v_cvt_pk_bf16_f32 v{ac}, v{ac}, v{ac+1}")
            a(f"v_cvt_pk_bf16_f32 v{ac+1}, v{ac+2}, v{ac+3}")
            a(f"global_store_dwordx2 v{v_t if qt == 0 else v_t2}, {vr(ac,2)}, s[{S_B}:{S_B+1}] offset:{dt*32} sc1")
    a("s_waitcnt vmcnt(0)")
    a("s_barrier")
    a(f"s_lshr_b32 s{s_t0}, s{s_s}, 2")
    a(f"s_lshl_b32 s{s_t0}, s{s_t0}, 2")
    a(f"s_add_u32 s{s_t0}, s{s_t0}, 128")
    a(f"s_and_b32 s{s_t1}, s{s_s}, 3")
    a(f"s_lshl_b32 s{s_t1}, s{s_t1}, 3")
    a(f"s_lshl_b32 s{s_t1}, 1, s{s_t1}")
    signal_dbg(a, name + "_asg", s_t0, (s_t1,), v_t, v_t2, s_w)
    if TL: wstamp2(a, s_e, 48)
    a(f"s_add_u32 s{s_e}, s{s_e}, 48")
    a(f"s_cmp_lt_u32 s{s_e}, 512")
    a(f"s_cbranch_scc1 {name}_loop")
    a(f"s_branch {name}_done")
    a.label(f"{name}_wo_init")
    a(f"s_mul_i32 s{s_t0}, s{S_WID}, 3277")
    a(f"s_lshr_b32 s{s_s}, s{s_t0}, 16")
    a(f"s_mul_i32 s{s_t0}, s{s_s}, 20")
    a(f"s_sub_u32 s{s_i}, s{S_WID}, s{s_t0}")
    a(f"s_mul_i32 s{s_t2}, s{s_w}, {1024*1280}")
    a(f"s_lshl_b32 s{s_t1}, s{s_i}, 6")
    a(f"s_add_u32 s{s_t2}, s{s_t2}, s{s_t1}")
    for rnd in range(2):
        for i in range(32):
            a(f"s_add_u32 m0, s{s_lb}, {i*1024}")
            a(f"s_add_u32 s{s_t1}, s{s_t2}, {(rnd*512 + i*16)*1280}")
            a(f"buffer_load_dwordx4 v{v_bo}, s[{SRD}:{SRD+3}], s{s_t1} offen lds")
        a("s_waitcnt vmcnt(0)")
        for ks in range(16):
            for nt in range(2):
                r = ((rnd*16 + ks)*2 + nt)*4
                a(f"ds_read_b64_tr_b16 {ar(r,2)}, v{v_tr} offset:{ks*2048 + nt*32}")
                a(f"ds_read_b64_tr_b16 {ar(r+2,2)}, v{v_tr} offset:{ks*2048 + nt*32 + 256}")
        a("s_waitcnt lgkmcnt(0)")
    a.label(f"{name}_wo")
    a(f"s_lshr_b32 s{s_t0}, s{s_s}, 2")
    a(f"s_lshl_b32 s{s_t0}, s{s_t0}, 2")
    poll_dbg(a, name + "_w1", s_t0, 24, 6, v_t, v_t2, s_t1, s_t2, s_w)
    a(f"s_add_u32 s{s_t0}, s{s_t0}, 128")
    a(f"s_and_b32 s{s_sh}, s{s_s}, 3")
    a(f"s_lshl_b32 s{s_sh}, s{s_sh}, 3")
    poll_dbg(a, name + "_w2", s_t0, (s_sh,), 8, v_t, v_t2, s_t1, s_t2, s_w)
    a(f"s_mul_i32 s{s_t0}, s{s_s}, {32*1280}")
    a(f"s_lshl_b32 s{s_t1}, s{s_i}, 6")
    a(f"s_add_u32 s{s_so}, s{s_t0}, s{s_t1}")
    a(f"s_add_u32 s{s_t0}, s{s_so}, {WS_B}")
    a(f"s_add_u32 s{S_B}, s{S_WS}, s{s_t0}")
    a(f"s_addc_u32 s{S_B+1}, s{S_WS+1}, 0")
    a(f"global_load_dwordx2 {vr(v_bb,2)}, v{v_oo}, s[{S_B}:{S_B+1}] sc1")
    a(f"s_lshl_b32 s{s_t0}, s{s_s}, 7")
    a(f"s_lshr_b32 s{s_t1}, s{s_w}, 1")
    a(f"s_lshl_b32 s{s_t1}, s{s_t1}, 6")
    a(f"s_add_u32 s{s_t0}, s{s_t0}, s{s_t1}")
    a(f"s_add_u32 s{s_t0}, s{s_t0}, {WS_G}")
    a(f"s_add_u32 s{S_B}, s{S_WS}, s{s_t0}")
    a(f"s_addc_u32 s{S_B+1}, s{S_WS+1}, 0")
    a(f"v_lshlrev_b32 v{v_t}, 2, v{v_n}")
    a(f"global_load_dword v{v_gg}, v{v_t}, s[{S_B}:{S_B+1}] sc1")
    a(f"s_lshl_b32 s{s_t0}, s{s_s}, 18")
    a(f"s_lshl_b32 s{s_t1}, s{s_w}, 11")
    a(f"s_add_u32 s{s_t0}, s{s_t0}, s{s_t1}")
    a(f"s_add_u32 s{s_t0}, s{s_t0}, {WS_O}")
    a(f"s_add_u32 s{S_B}, s{S_WS}, s{s_t0}")
    a(f"s_addc_u32 s{S_B+1}, s{S_WS+1}, 0")
    a(f"v_add_u32 v{v_t3}, 0x20000, v{v_qo}")
    def issue(c):
        buf = c % 3
        for ks in range(8):
            for mt in range(2):
                a(f"global_load_dwordx4 {vr(v_A + buf*64 + (ks*2+mt)*4, 4)}, v{v_qo if mt == 0 else v_t3}, s[{S_B}:{S_B+1}] offset:{(c*8+ks)*64}{OSC}")
    issue(0); issue(1); issue(2)
    for c in range(4):
        buf = c % 3
        a(f"s_waitcnt vmcnt({[32, 32, 16, 0][c]})")
        for ks in range(8):
            for mt in range(2):
                for nt in range(2):
                    acc = vr(v_acc + (mt*2+nt)*4, 4)
                    a(f"v_mfma_f32_16x16x32_bf16 {acc}, {ar(((c*8+ks)*2+nt)*4,4)}, {vr(v_A + buf*64 + (ks*2+mt)*4,4)}, {'0' if (c == 0 and ks == 0) else acc}")
        if c == 0:
            issue(3)
    a("s_nop 7")
    a("s_nop 1")
    for t in range(4):
        a(f"ds_write_b128 v{v_rw}, {vr(v_acc + 4*t,4)} offset:{t*1024}")
    a("s_waitcnt lgkmcnt(0)")
    a("s_barrier")
    a(f"v_add_u32 v{v_t}, 65536, v{v_rr}")
    for w in range(4):
        a(f"ds_read_b128 {vr(v_A + 4*w,4)}, v{v_rr if w < 2 else v_t} offset:{(w&1)*32768}")
    a("s_waitcnt lgkmcnt(0)")
    a("s_barrier")
    R = v_A
    for r in range(4):
        a(f"v_add_f32 v{R+r}, v{R+r}, v{R+4+r}")
        a(f"v_add_f32 v{R+8+r}, v{R+8+r}, v{R+12+r}")
    for r in range(4):
        a(f"v_add_f32 v{R+r}, v{R+r}, v{R+8+r}")
    a(f"v_sub_f32 v{v_t2}, 1.0, v{v_gg}")
    a(f"v_cvt_pk_bf16_f32 v{v_t2}, v{v_t2}, v{v_t2}")
    a(f"v_lshlrev_b32 v{v_t2}, 16, v{v_t2}")
    a(f"v_cvt_pk_bf16_f32 v{R+4}, v{R}, v{R+1}")
    a(f"v_cvt_pk_bf16_f32 v{R+5}, v{R+2}, v{R+3}")
    for h in range(2):
        a(f"v_lshlrev_b32 v{R+2*h}, 16, v{R+4+h}")
        a(f"v_and_b32 v{R+2*h+1}, 0xffff0000, v{R+4+h}")
        a(f"v_lshlrev_b32 v{R+8+2*h}, 16, v{v_bb+h}")
        a(f"v_and_b32 v{R+8+2*h+1}, 0xffff0000, v{v_bb+h}")
    for r in range(4):
        a(f"v_mul_f32 v{R+r}, v{R+r}, v{v_gg}")
        a(f"v_mul_f32 v{R+8+r}, v{R+8+r}, v{v_t2}")
    for h in range(2):
        a(f"v_cvt_pk_bf16_f32 v{R+4+h}, v{R+2*h}, v{R+2*h+1}")
        a(f"v_cvt_pk_bf16_f32 v{R+6+h}, v{R+8+2*h}, v{R+8+2*h+1}")
    for h in range(2):
        a(f"v_lshlrev_b32 v{R+2*h}, 16, v{R+4+h}")
        a(f"v_and_b32 v{R+2*h+1}, 0xffff0000, v{R+4+h}")
        a(f"v_lshlrev_b32 v{R+8+2*h}, 16, v{R+6+h}")
        a(f"v_and_b32 v{R+8+2*h+1}, 0xffff0000, v{R+6+h}")
    for r in range(4):
        a(f"v_add_f32 v{R+r}, v{R+r}, v{R+8+r}")
    a(f"v_cvt_pk_bf16_f32 v{R+4}, v{R}, v{R+1}")
    a(f"v_cvt_pk_bf16_f32 v{R+5}, v{R+2}, v{R+3}")
    a(f"s_add_u32 s{S_B}, s{S_OUT}, s{s_so}")
    a(f"s_addc_u32 s{S_B+1}, s{S_OUT+1}, 0")
    a(f"global_store_dwordx2 v{v_oo}, {vr(R+4,2)}, s[{S_B}:{S_B+1}]")
    if TL: wstamp2(a, s_s, 4)
    a(f"s_add_u32 s{s_s}, s{s_s}, 4")
    a(f"s_cmp_lt_u32 s{s_s}, 64")
    a(f"s_cbranch_scc1 {name}_wo")
    a.label(f"{name}_done")
    a("s_waitcnt vmcnt(0)")
```

```python
from gen_common import *
from m_sync import *
from m_rec import gen_rec_body
from m_gemm1 import gen_gemm1_body
from m_down import gen_down_body
from m_tail import gen_clear_body, gen_gate_body, gen_tail_body
import sys
out = sys.argv[1] if len(sys.argv) > 1 else "mega.s"
kw = dict(x.split("=") for x in sys.argv[2:])
kw = {k: int(v) for k, v in kw.items()}
a = Asm()
a.raw("; @launch kernel=mega_kernel grid=(256,1,1) block=(256,1,1) lds=131072")
a.raw('.amdgcn_target "amdgcn-amd-amdhsa--gfx950"')
a.raw(".text")
kernel_header(a, "mega_kernel")
a("s_cmp_ge_u32 s2, 256")
a("s_cbranch_scc1 mega_end")
a("s_cmp_ge_u32 s2, 128")
a("s_cbranch_scc1 mega_worker")
gen_rec_body(a, "rec", **{k: v for k, v in kw.items() if k != "ONC"})
a.label("mega_worker")
a(f"s_sub_u32 s{S_WID}, s2, 128")
TL = kw.get("TL", 0)
if TL: wstamp(a, "s0", 0)
gen_clear_body(a, "clr")
if TL: wstamp(a, "s1", 1)
gen_gemm1_body(a, "g1")
if TL: wstamp(a, "s2", 2)
a(f"s_cmp_ge_u32 s{S_WID}, 96")
a("s_cbranch_scc1 mega_tail")
a(f"s_cmp_ge_u32 s{S_WID}, 80")
a("s_cbranch_scc1 mega_gate")
gen_down_body(a, "dn")
a("s_branch mega_tail")
a.label("mega_gate")
gen_gate_body(a, "gt")
a.label("mega_tail")
if TL: wstamp(a, "s3", 3)
gen_tail_body(a, "tl", TL=TL, ONC=kw.get("ONC", 0))
a.label("mega_end")
a("s_endpgm")
a.raw('.section .rodata,"a"')
a.raw(".p2align 6")
a.raw(kernel_desc("mega_kernel", 512, 102, 256))
open(out, "w").write(a.text())
```

```python
from gen_common import *
WS_PROG = 112 * MB
NWORK = 128

MSTRIDE = 1312
LDS_MEM = 0
LDS_SP  = 10496
SPSTRIDE = 208
LDS_VP  = LDS_SP + 32 * SPSTRIDE
LDS_RED = LDS_VP + 2048
REC_LDS = 3 * 40960
SPIN_MAX = 1 << 20
SCALE_LOG2E = 128 ** -0.5 * 1.4426950408889634

import struct
def f32bits(x):
    return struct.unpack("<I", struct.pack("<f", x))[0]

def gen_rec_body(a, name, nsteps=64, prof=False, RC=RC, PRESLEEP=0, POLLSLEEP=0, GPRE=0, GPOLL=0, TL=0, PUB4=0, PACK=0, PP=0, FS=0):
    NST = 10
    def stamp(i):
        if prof:
            a(f"s_memtime s[{64+2*i}:{65+2*i}]")
            a("s_waitcnt lgkmcnt(0)")
    def wq(t, ks): return ar((t * 20 + ks) * 4, 4)
    def wk(t, ks):
        i = t * 20 + ks
        if i < 24: return ar(160 + i * 4, 4)
        return vr(112 + (i - 24) * 4, 4)
    def wk2(t, ks, half):
        i = t * 20 + ks
        if i < 24: return ar(160 + i * 4 + 2 * half, 2)
        return vr(112 + (i - 24) * 4 + 2 * half, 2)
    def wv(i): return vr(176 + i * 4, 4)
    def wo(t): return vr(216 + t * 4, 4)
    V = Alloc(1, 112)
    v_l = V.get("l"); v_n = V.get("n"); v_g = V.get("g")
    v_fr = V.get("fragaddr")
    v_g0 = V.get("g0"); v_g1 = V.get("g1"); v_g2 = V.get("g2")
    v_g3 = V.get("g3")
    v_w0 = V.get("w0"); v_w1 = V.get("w1"); v_w2 = V.get("w2")
    v_spw = V.get("spw"); v_spr = V.get("spr"); v_vpw = V.get("vpw"); v_vpr = V.get("vpr")
    v_kt = V.get("ktoff"); v_vt = V.get("vtoff"); v_km = V.get("kmoff"); v_vm = V.get("vmoff")
    v_part = V.get("partoff"); v_t = V.get("t"); v_t2 = V.get("t2"); v_t3 = V.get("t3")
    v_redw = V.get("redw"); v_redr = V.get("redr"); v_pub = V.get("pub")
    v_frag = V.get("frag", 16, 4)
    v_acc = V.get("acc", 20, 4)
    v_kf = V.get("kf", 4, 4)
    v_ktk = V.get("ktok", 8, 4)
    v_qf = V.get("qf", 4, 4)
    v_vtk = V.get("vtok", 8, 4)
    v_s = V.get("s", 12, 4)
    v_p = V.get("p", 6, 2)
    v_vf = V.get("vf", 4, 2)
    v_big = v_frag
    v_stmp = v_acc
    s_h, s_j, s_w = 3, 4, 5
    S_MEM0, S_WQ, S_WK, S_WV, S_WO, S_WS = 6, 8, 10, 12, 14, 16
    S_KT, S_VT, S_KM, S_VM, S_MB, S_PT = 18, 20, 22, 24, 26, 28
    s_step = 30; s_t0 = 31
    S_MN8, S_MG2, S_TB, S_TB2 = 32, 34, 36, 38
    s_spin = 40; s_t1 = 41; s_c = 42; s_t2 = 43; S_SV = 44; S_PB = 46; S_MBS = 48; S_RB = 50

    S_DBG = 52; s_kvm = 54; S_PG = 56
    a("s_load_dwordx2 s[52:53], s[0:1], 104")
    a("s_load_dwordx2 s[6:7], s[0:1], 8")
    a("s_load_dwordx4 s[8:11], s[0:1], 16")
    a("s_load_dwordx4 s[12:15], s[0:1], 32")
    a("s_load_dwordx2 s[16:17], s[0:1], 112")
    a(f"s_lshr_b32 s{s_h}, s2, 2")
    a(f"s_and_b32 s{s_j}, s2, 3")
    a(f"v_lshrrev_b32 v{v_t}, 6, v0")
    a(f"v_and_b32 v{v_l}, 63, v0")
    a(f"v_readfirstlane_b32 s{s_w}, v{v_t}")
    a(f"v_and_b32 v{v_n}, 15, v0")
    a(f"v_lshrrev_b32 v{v_g}, 4, v{v_l}")
    a(f"v_cmp_gt_u32 s[{S_MN8}:{S_MN8+1}], 8, v{v_n}")
    a(f"v_cmp_gt_u32 s[{S_MG2}:{S_MG2+1}], 2, v{v_g}")
    a("s_waitcnt lgkmcnt(0)")
    for (sb, off) in ((S_KT, WS_K), (S_VT, WS_VT), (S_KM, WS_KMEM), (S_VM, WS_VMEMT), (S_MB, WS_MEMB), (S_PT, WS_PART)):
        a(f"s_add_u32 s{sb}, s{S_WS}, {off}")
        a(f"s_addc_u32 s{sb+1}, s{S_WS+1}, 0")
    v_sg = v_g0; v_sl = v_g1; v_tq = v_w0; v_tk = v_w1; v_tv = v_w2
    a(f"v_lshrrev_b32 v{v_sg}, 4, v0")
    a(f"v_lshlrev_b32 v{v_sg}, 13, v{v_sg}")
    a(f"v_lshlrev_b32 v{v_t}, 4, v{v_n}")
    a(f"v_add_u32 v{v_sg}, v{v_sg}, v{v_t}")
    a(f"s_lshl_b32 s{s_t0}, s{s_h}, 8")
    a(f"v_add_u32 v{v_sg}, s{s_t0}, v{v_sg}")
    a(f"v_lshlrev_b32 v{v_sl}, 4, v0")
    a(f"v_lshrrev_b32 v{v_t}, 2, v{v_n}")
    a(f"v_lshl_add_u32 v{v_t}, v{v_g}, 3, v{v_t}")
    a(f"v_lshlrev_b32 v{v_t}, 8, v{v_t}")
    a(f"v_and_b32 v{v_t2}, 3, v0")
    a(f"v_lshl_add_u32 v{v_t}, v{v_t2}, 3, v{v_t}")
    a(f"s_lshl_b32 s{s_t0}, s{s_w}, 6")
    a(f"v_add_u32 v{v_tq}, s{s_t0}, v{v_t}")
    a(f"v_add_u32 v{v_tk}, 40960, v{v_tq}")
    a(f"s_and_b32 s{s_t0}, s{s_w}, 1")
    a(f"s_lshl_b32 s{s_t0}, s{s_t0}, 5")
    a(f"s_lshl_b32 s{s_t1}, s{s_j}, 6")
    a(f"s_add_u32 s{s_t0}, s{s_t0}, s{s_t1}")
    a(f"s_add_u32 s{s_t0}, s{s_t0}, 81920")
    a(f"v_add_u32 v{v_tv}, s{s_t0}, v{v_t}")
    SRDW = 60
    if FS & 1:
        for i in range(4):
            a(f"v_mov_b32 v{v_big+i}, -1")
        for (base, nbytes) in ((WS_MEMB, MEMB_BYTES), (WS_PART, PART_BYTES)):
            per = nbytes // (128 * 4096)
            a(f"s_mul_i32 s{s_t0}, s2, {per*4096}")
            a(f"s_add_u32 s{s_t0}, s{s_t0}, {base}")
            a(f"s_add_u32 s{S_TB}, s{S_WS}, s{s_t0}")
            a(f"s_addc_u32 s{S_TB+1}, s{S_WS+1}, 0")
            a(f"v_mov_b32 v{v_t2}, v{v_sl}")
            for i in range(per):
                a(f"global_store_dwordx4 v{v_t2}, {vr(v_big,4)}, s[{S_TB}:{S_TB+1}] sc1")
                a(f"v_add_u32 v{v_t2}, 4096, v{v_t2}")
        a(f"s_lshl_b32 s{s_t0}, s2, 2")
        a(f"s_add_u32 s{s_t0}, s{s_t0}, {WS_PROG}")
        a(f"s_add_u32 s{S_TB}, s{S_WS}, s{s_t0}")
        a(f"s_addc_u32 s{S_TB+1}, s{S_WS+1}, 0")
        a(f"v_mov_b32 v{v_t2}, 0")
        a("s_mov_b64 exec, 1")
        a(f"global_store_dword v{v_t2}, v{v_t2}, s[{S_TB}:{S_TB+1}] sc1")
        a("s_mov_b64 exec, -1")
    if FS & 2:
        a(f"s_mov_b32 s{SRDW+2}, {640*8192}")
        a(f"s_mov_b32 s{SRDW+3}, 0x00020000")
        a(f"s_lshl_b32 s{s_t2}, s{s_w}, 10")
    if (FS & 3) == 1:
        a("s_waitcnt vmcnt(0)")
    for rnd in range(4):
        if FS & 2:
            for m, sb in enumerate((S_WQ, S_WK, S_WV)):
                a(f"s_mov_b32 s{SRDW}, s{sb}")
                a(f"s_and_b32 s{SRDW+1}, s{sb+1}, 0xffff")
                for i in range(10):
                    a(f"s_add_u32 m0, s{s_t2}, {m*40960 + i*4096}")
                    a(f"s_mov_b32 s{s_t0}, {(160 * rnd + 16 * i) * 8192}")
                    a(f"buffer_load_dwordx4 v{v_sg}, s[{SRDW}:{SRDW+3}], s{s_t0} offen lds")
            a("s_waitcnt vmcnt(0)")
        else:
            for m, sb in enumerate((S_WQ, S_WK, S_WV)):
                for i in range(10):
                    off = (160 * rnd + 16 * i) * 8192
                    a(f"s_add_u32 s{S_TB}, s{sb}, {off}")
                    a(f"s_addc_u32 s{S_TB+1}, s{sb+1}, 0")
                    a(f"global_load_dwordx4 {vr(v_big + 4*i, 4)}, v{v_sg}, s[{S_TB}:{S_TB+1}]")
                for i in range(10):
                    a(f"s_waitcnt vmcnt({9-i})")
                    a(f"ds_write_b128 v{v_sl}, {vr(v_big + 4*i, 4)} offset:{i*4096}" if m == 0 else
                      f"ds_write_b128 v{v_t3}, {vr(v_big + 4*i, 4)} offset:{i*4096}")
                a(f"v_add_u32 v{v_t3}, {40960*(m+1)}, v{v_sl}")
        a("s_waitcnt lgkmcnt(0)")
        a("s_barrier")
        for ksl in range(5):
            ks = rnd * 5 + ksl
            for t in range(2):
                i = t * 20 + ks
                a(f"ds_read_b64_tr_b16 {ar(i*4, 2)}, v{v_tq} offset:{ksl*8192 + 32*t}")
                a(f"ds_read_b64_tr_b16 {ar(i*4+2, 2)}, v{v_tq} offset:{ksl*8192 + 32*t + 1024}")
                a(f"ds_read_b64_tr_b16 {wk2(t, ks, 0)}, v{v_tk} offset:{ksl*8192 + 32*t}")
                a(f"ds_read_b64_tr_b16 {wk2(t, ks, 1)}, v{v_tk} offset:{ksl*8192 + 32*t + 1024}")
        lab = a.newlabel("L_skipv")
        a(f"s_lshr_b32 s{s_t0}, s{s_w}, 1")
        a(f"s_cmp_lg_u32 s{s_t0}, {rnd >> 1}")
        a(f"s_cbranch_scc1 {lab}")
        for ksl in range(5):
            i = (rnd & 1) * 5 + ksl
            a(f"ds_read_b64_tr_b16 {vr(176 + i*4, 2)}, v{v_tv} offset:{ksl*8192}")
            a(f"ds_read_b64_tr_b16 {vr(176 + i*4 + 2, 2)}, v{v_tv} offset:{ksl*8192 + 1024}")
        a.label(lab)
        a("s_waitcnt lgkmcnt(0)")
        a("s_barrier")
    a(f"s_lshl_b32 s{s_t0}, s2, 5")
    a(f"s_mul_i32 s{s_t0}, s{s_t0}, 1280")
    a(f"s_add_u32 s{S_TB}, s{S_WO}, s{s_t0}")
    a(f"s_addc_u32 s{S_TB+1}, s{S_WO+1}, 0")
    for i in range(10):
        a(f"v_add_u32 v{v_t2}, {i*4096}, v{v_sl}")
        a(f"global_load_dwordx4 {vr(v_big + 4*i, 4)}, v{v_t2}, s[{S_TB}:{S_TB+1}]")
    for i in range(10):
        a(f"s_waitcnt vmcnt({9-i})")
        a(f"ds_write_b128 v{v_sl}, {vr(v_big + 4*i, 4)} offset:{i*4096}")
    a("s_waitcnt lgkmcnt(0)")
    a("s_barrier")
    a(f"v_lshrrev_b32 v{v_t}, 2, v{v_n}")
    a(f"v_lshl_add_u32 v{v_t}, v{v_g}, 2, v{v_t}")
    a(f"v_mul_u32_u24 v{v_t}, 1280, v{v_t}")
    a(f"v_and_b32 v{v_t2}, 3, v0")
    a(f"v_lshl_add_u32 v{v_t}, v{v_t2}, 3, v{v_t}")
    a(f"s_mul_i32 s{s_t0}, s{s_w}, 320")
    a(f"v_add_u32 v{v_t}, s{s_t0}, v{v_t}")
    for t in range(10):
        a(f"ds_read_b64_tr_b16 {vr(216 + t*4, 2)}, v{v_t} offset:{32*t}")
        a(f"ds_read_b64_tr_b16 {vr(216 + t*4 + 2, 2)}, v{v_t} offset:{32*t + 16*1280}")
    a("s_waitcnt lgkmcnt(0)")
    a("s_barrier")
    a(f"v_and_b32 v{v_t}, 7, v0")
    a(f"v_mul_u32_u24 v{v_fr}, {MSTRIDE}, v{v_t}")
    a(f"v_lshl_add_u32 v{v_fr}, v{v_g}, 4, v{v_fr}")
    a(f"v_lshlrev_b32 v{v_g0}, 4, v0")
    a(f"v_add_u32 v{v_g1}, 4096, v{v_g0}")
    a(f"v_add_u32 v{v_g2}, 8192, v{v_g0}")
    a(f"v_cmp_gt_u32 vcc, 128, v0")
    a(f"v_cndmask_b32 v{v_g3}, v{v_g0}, v{v_g2}, vcc")
    a(f"v_mul_u32_u24 v{v_w0}, {MSTRIDE}, v{v_t}")
    a(f"v_lshrrev_b32 v{v_t2}, 3, v0")
    a(f"v_lshl_add_u32 v{v_w0}, v{v_t2}, 4, v{v_w0}")
    a(f"v_add_u32 v{v_w1}, 512, v{v_w0}")
    a(f"v_add_u32 v{v_w2}, 1024, v{v_w0}")
    a(f"v_mul_u32_u24 v{v_spw}, {SPSTRIDE}, v{v_n}")
    a(f"v_lshl_add_u32 v{v_spw}, v{v_g}, 4, v{v_spw}")
    a(f"s_mul_i32 s{s_t0}, s{s_w}, {8*SPSTRIDE}")
    a(f"s_add_u32 s{s_t0}, s{s_t0}, {LDS_SP}")
    a(f"v_add_u32 v{v_spw}, s{s_t0}, v{v_spw}")
    a(f"v_mul_u32_u24 v{v_spr}, {SPSTRIDE}, v{v_t}")
    a(f"v_lshl_add_u32 v{v_spr}, v{v_g}, 4, v{v_spr}")
    a(f"v_add_u32 v{v_spr}, {LDS_SP}, v{v_spr}")
    a(f"v_lshlrev_b32 v{v_vpw}, 5, v{v_n}")
    a(f"v_and_b32 v{v_t2}, 1, v{v_g}")
    a(f"v_lshl_add_u32 v{v_vpr}, v{v_t2}, 4, v{v_vpw}")
    a(f"v_add_u32 v{v_vpr}, {LDS_VP}, v{v_vpr}")
    a(f"v_lshl_add_u32 v{v_vpw}, v{v_g}, 4, v{v_vpw}")
    a(f"s_lshl_b32 s{s_t0}, s{s_w}, 9")
    a(f"s_add_u32 s{s_t0}, s{s_t0}, {LDS_VP}")
    a(f"v_add_u32 v{v_vpw}, s{s_t0}, v{v_vpw}")
    a(f"v_lshlrev_b32 v{v_kt}, 13, v{v_n}")
    a(f"v_lshl_add_u32 v{v_kt}, v{v_g}, 3, v{v_kt}")
    a(f"s_lshl_b32 s{s_t0}, s{s_h}, 8")
    a(f"s_lshl_b32 s{s_t1}, s{s_w}, 6")
    a(f"s_add_u32 s{s_t0}, s{s_t0}, s{s_t1}")
    a(f"v_add_u32 v{v_kt}, s{s_t0}, v{v_kt}")
    a(f"v_lshlrev_b32 v{v_vt}, 12, v{v_n}")
    a(f"v_lshl_add_u32 v{v_vt}, v{v_g}, 3, v{v_vt}")
    a(f"s_lshl_b32 s{s_t0}, s2, 17")
    a(f"v_add_u32 v{v_vt}, s{s_t0}, v{v_vt}")
    a(f"v_lshlrev_b32 v{v_km}, 13, v{v_n}")
    a(f"v_lshl_add_u32 v{v_km}, v{v_g}, 3, v{v_km}")
    a(f"s_lshl_b32 s{s_t0}, s2, 6")
    a(f"v_add_u32 v{v_km}, s{s_t0}, v{v_km}")
    a(f"v_lshlrev_b32 v{v_vm}, 4, v{v_n}")
    a(f"v_lshl_add_u32 v{v_vm}, v{v_g}, 3, v{v_vm}")
    a(f"s_lshl_b32 s{s_t0}, s2, 9")
    a(f"v_add_u32 v{v_vm}, s{s_t0}, v{v_vm}")
    a(f"v_lshrrev_b32 v{v_part}, 1, v{v_g}")
    a(f"v_lshlrev_b32 v{v_part}, 15, v{v_part}")
    a(f"v_lshl_add_u32 v{v_part}, v{v_n}, 5, v{v_part}")
    a(f"v_and_b32 v{v_t2}, 1, v{v_g}")
    a(f"v_lshl_add_u32 v{v_part}, v{v_t2}, 4, v{v_part}")
    a(f"s_mul_i32 s{s_t0}, s{s_w}, {20*32768}")
    a(f"s_lshl_b32 s{s_t1}, s2, 8")
    a(f"s_add_u32 s{s_t0}, s{s_t0}, s{s_t1}")
    a(f"v_add_u32 v{v_part}, s{s_t0}, v{v_part}")
    if PACK:
        a(f"v_add_u32 v{v_t2}, {65536 - 256}, v{v_part}")
        a(f"v_cndmask_b32 v{v_part}, v{v_t2}, v{v_part}, s[{S_MN8}:{S_MN8+1}]")
    a(f"v_lshlrev_b32 v{v_redw}, 4, v0")
    a(f"v_add_u32 v{v_redw}, {LDS_RED}, v{v_redw}")
    a(f"v_lshlrev_b32 v{v_redr}, 3, v{v_l}")
    a(f"v_add_u32 v{v_redr}, {LDS_RED}, v{v_redr}")
    a(f"v_lshlrev_b32 v{v_pub}, 2, v{v_l}")
    a(f"s_lshl_b32 s{s_t0}, s2, 7")
    a(f"v_add_u32 v{v_pub}, s{s_t0}, v{v_pub}")
    a(f"s_mov_b32 s{s_c}, {f32bits(SCALE_LOG2E)}")
    a(f"s_mov_b32 s{s_step}, 0")
    a(f"s_and_b32 s{s_t0}, s2, {RC-1}")
    a(f"s_mul_i32 s{s_t0}, s{s_t0}, 10240")
    a(f"s_add_u32 s{S_MBS}, s{S_MB}, s{s_t0}")
    a(f"s_addc_u32 s{S_MBS+1}, s{S_MB+1}, 0")

    a(f"s_lshl_b32 s{s_t0}, s2, 2")
    a(f"s_add_u32 s{s_t0}, s{s_t0}, {WS_PROG}")
    a(f"s_add_u32 s{S_PG}, s{S_WS}, s{s_t0}")
    a(f"s_addc_u32 s{S_PG+1}, s{S_WS+1}, 0")
    a(f"s_mov_b32 s{s_kvm}, 0")
    a(f"s_mov_b32 s{s_spin}, 0")
    if FS & 1:
        a(f"s_cmp_lg_u32 s{s_w}, 0")
        a(f"s_cbranch_scc1 {name}_ncs")
        a(f"v_mov_b32 v{v_t}, 1")
        a(f"v_mov_b32 v{v_t2}, 64")
        a("s_mov_b64 exec, 1")
        a(f"global_atomic_add v{v_t2}, v{v_t}, s[{S_DBG}:{S_DBG+1}] sc1")
        a("s_mov_b64 exec, -1")
        a.label(f"{name}_ncs")
    a(f"v_mov_b32 v{v_t2}, 0")
    a.label(f"{name}_cw")
    a(f"global_load_dword v{v_t}, v{v_t2}, s[{S_DBG}:{S_DBG+1}] offset:64 sc1")
    a(f"s_add_u32 s{s_spin}, s{s_spin}, 1")
    a("s_waitcnt vmcnt(0)")
    a(f"v_readfirstlane_b32 s{s_t0}, v{v_t}")
    a(f"s_cmp_ge_u32 s{s_spin}, {SPIN_MAX}")
    a(f"s_cbranch_scc1 {name}_loop")
    a(f"s_cmp_lt_u32 s{s_t0}, {NWORK}")
    a(f"s_cbranch_scc1 {name}_cw")
    a.label(f"{name}_loop")
    stamp(0)
    if TL:
        a("s_memrealtime s[64:65]")
        a(f"s_lshl_b32 s{s_t0}, s2, 8")
        a(f"s_lshl_b32 s{s_t1}, s{s_step}, 2")
        a(f"s_add_u32 s{s_t0}, s{s_t0}, s{s_t1}")
        a(f"s_add_u32 s{s_t0}, s{s_t0}, {120*MB}")
        a(f"v_mov_b32 v{v_t2}, s{s_t0}")
        a("s_waitcnt lgkmcnt(0)")
        a(f"v_mov_b32 v{v_t}, s64")
        a(f"s_cmp_lg_u32 s{s_w}, 0")
        a(f"s_cbranch_scc1 {name}_tl0")
        a("s_mov_b64 exec, 1")
        a(f"global_store_dword v{v_t2}, v{v_t}, s[{S_WS}:{S_WS+1}]")
        a("s_mov_b64 exec, -1")
        a.label(f"{name}_tl0")
    a(f"s_lshr_b32 s{s_t0}, s{s_step}, 2")
    a(f"s_bitcmp1_b32 s{s_kvm}, s{s_t0}")
    a(f"s_cbranch_scc1 {name}_kvok")
    a(f"s_mov_b32 s{s_spin}, 0")
    a(f"v_lshlrev_b32 v{v_t2}, 2, v{v_n}")
    a.label(f"{name}_kvp")
    a(f"global_load_dword v{v_t}, v{v_t2}, s[{S_DBG}:{S_DBG+1}] sc1")
    a(f"s_add_u32 s{s_spin}, s{s_spin}, 1")
    a("s_waitcnt vmcnt(0)")
    a(f"v_and_b32 v{v_t}, 255, v{v_t}")
    a(f"v_cmp_eq_u32 vcc, 64, v{v_t}")
    a(f"s_and_b32 s{s_kvm}, vcc_lo, 0xffff")
    a(f"s_cmp_ge_u32 s{s_spin}, {SPIN_MAX}")
    a(f"s_cbranch_scc1 {name}_kvok")
    a(f"s_bitcmp1_b32 s{s_kvm}, s{s_t0}")
    a(f"s_cbranch_scc0 {name}_kvp")
    a.label(f"{name}_kvok")
    a(f"s_lshl_b32 s{s_t0}, s{s_step}, 18")
    a(f"s_add_u32 s{S_TB}, s{S_KT}, s{s_t0}")
    a(f"s_addc_u32 s{S_TB+1}, s{S_KT+1}, 0")
    a(f"v_add_u32 v{v_t}, 0x20000, v{v_kt}")
    a(f"global_load_dwordx2 {vr(v_ktk, 2)}, v{v_kt}, s[{S_TB}:{S_TB+1}] sc1")
    a(f"global_load_dwordx2 {vr(v_ktk+2, 2)}, v{v_kt}, s[{S_TB}:{S_TB+1}] offset:32 sc1")
    a(f"global_load_dwordx2 {vr(v_ktk+4, 2)}, v{v_t}, s[{S_TB}:{S_TB+1}] sc1")
    a(f"global_load_dwordx2 {vr(v_ktk+6, 2)}, v{v_t}, s[{S_TB}:{S_TB+1}] offset:32 sc1")
    a(f"s_lshl_b32 s{s_t0}, s{s_step}, 6")
    a(f"s_add_u32 s{S_TB}, s{S_VT}, s{s_t0}")
    a(f"s_addc_u32 s{S_TB+1}, s{S_VT+1}, 0")
    a(f"v_add_u32 v{v_t}, 0x10000, v{v_vt}")
    a(f"global_load_dwordx2 {vr(v_vtk, 2)}, v{v_vt}, s[{S_TB}:{S_TB+1}] sc1")
    a(f"global_load_dwordx2 {vr(v_vtk+2, 2)}, v{v_vt}, s[{S_TB}:{S_TB+1}] offset:32 sc1")
    a(f"global_load_dwordx2 {vr(v_vtk+4, 2)}, v{v_t}, s[{S_TB}:{S_TB+1}] sc1")
    a(f"global_load_dwordx2 {vr(v_vtk+6, 2)}, v{v_t}, s[{S_TB}:{S_TB+1}] offset:32 sc1")
    F = v_frag
    a(f"s_cmp_lg_u32 s{s_step}, 0")
    a(f"s_cbranch_scc1 {name}_poll")
    a(f"v_and_b32 v{v_t}, 7, v0")
    a(f"v_mul_u32_u24 v{v_t}, 1280, v{v_t}")
    a(f"v_lshrrev_b32 v{v_t2}, 3, v0")
    a(f"v_lshl_add_u32 v{v_t}, v{v_t2}, 4, v{v_t}")
    a(f"global_load_dwordx4 {vr(F, 4)}, v{v_t}, s[{S_MEM0}:{S_MEM0+1}]")
    a(f"global_load_dwordx4 {vr(F+4, 4)}, v{v_t}, s[{S_MEM0}:{S_MEM0+1}] offset:512")
    a(f"s_cmp_ge_u32 s{s_w}, 2")
    a(f"s_cbranch_scc1 {name}_g0a")
    a(f"global_load_dwordx4 {vr(F+8, 4)}, v{v_t}, s[{S_MEM0}:{S_MEM0+1}] offset:1024")
    a.label(f"{name}_g0a")
    a("s_waitcnt vmcnt(0)")
    a(f"s_branch {name}_gdone")
    a.label(f"{name}_poll")
    a(f"s_mul_i32 s{s_t0}, s{s_step}, {RC*10240}")
    a(f"s_add_u32 s{S_TB}, s{S_MBS}, s{s_t0}")
    a(f"s_addc_u32 s{S_TB+1}, s{S_MBS+1}, 0")
    a(f"s_mov_b32 s{s_spin}, 0")
    if not (PP & 1):
        a(f"v_mov_b32 v{F+8}, 0")
        a(f"v_mov_b32 v{F+9}, 0")
        a(f"v_mov_b32 v{F+10}, 0")
        a(f"v_mov_b32 v{F+11}, 0")
        if GPRE: a(f"s_sleep {GPRE}")
        a.label(f"{name}_poll_l")
        a(f"global_load_dwordx4 {vr(F, 4)}, v{v_g0}, s[{S_TB}:{S_TB+1}] sc1")
        a(f"global_load_dwordx4 {vr(F+4, 4)}, v{v_g1}, s[{S_TB}:{S_TB+1}] sc1")
        a(f"s_cmp_ge_u32 s{s_w}, 2")
        a(f"s_cbranch_scc1 {name}_poll_b")
        a(f"global_load_dwordx4 {vr(F+8, 4)}, v{v_g2}, s[{S_TB}:{S_TB+1}] sc1")
        a.label(f"{name}_poll_b")
        a(f"s_add_u32 s{s_spin}, s{s_spin}, 1")
        a("s_waitcnt vmcnt(0)")
        a(f"v_max3_u32 v{v_t}, v{F}, v{F+1}, v{F+2}")
        a(f"v_max3_u32 v{v_t2}, v{F+3}, v{F+4}, v{F+5}")
        a(f"v_max3_u32 v{v_t}, v{F+6}, v{F+7}, v{v_t}")
        a(f"v_max3_u32 v{v_t2}, v{F+8}, v{F+9}, v{v_t2}")
        a(f"v_max3_u32 v{v_t}, v{F+10}, v{F+11}, v{v_t}")
        a(f"v_max_u32 v{v_t}, v{v_t}, v{v_t2}")
        a(f"v_cmp_eq_u32 vcc, -1, v{v_t}")
        a(f"s_cmp_ge_u32 s{s_spin}, {SPIN_MAX}")
        a(f"s_cbranch_scc1 {name}_gdone")
        if GPOLL: a(f"s_sleep {GPOLL}")
        a(f"s_cbranch_vccnz {name}_poll_l")
        a.label(f"{name}_gdone")
        stamp(1)
        a(f"ds_write_b128 v{v_w0}, {vr(F, 4)}")
        a(f"ds_write_b128 v{v_w1}, {vr(F+4, 4)}")
        a(f"s_cmp_ge_u32 s{s_w}, 2")
        a(f"s_cbranch_scc1 {name}_gw")
        a(f"ds_write_b128 v{v_w2}, {vr(F+8, 4)}")
        a.label(f"{name}_gw")
    else:
        GA, GB = v_s, v_s + 12
        assert V.next <= 110 and v_p == v_s + 12
        def gissue(G):
            a(f"global_load_dwordx4 {vr(G, 4)}, v{v_g0}, s[{S_TB}:{S_TB+1}] sc1")
            a(f"global_load_dwordx4 {vr(G+4, 4)}, v{v_g1}, s[{S_TB}:{S_TB+1}] sc1")
            a(f"global_load_dwordx4 {vr(G+8, 4)}, v{v_g3}, s[{S_TB}:{S_TB+1}] sc1")
        def gcheck(G, lab):
            a("s_waitcnt vmcnt(3)")
            a(f"v_max3_u32 v{v_t}, v{G}, v{G+1}, v{G+2}")
            a(f"v_max3_u32 v{v_t2}, v{G+3}, v{G+4}, v{G+5}")
            a(f"v_max3_u32 v{v_t}, v{G+6}, v{G+7}, v{v_t}")
            a(f"v_max3_u32 v{v_t2}, v{G+8}, v{G+9}, v{v_t2}")
            a(f"v_max3_u32 v{v_t}, v{G+10}, v{G+11}, v{v_t}")
            a(f"v_max_u32 v{v_t}, v{v_t}, v{v_t2}")
            a(f"v_cmp_eq_u32 vcc, -1, v{v_t}")
            a(f"s_add_u32 s{s_spin}, s{s_spin}, 1")
            a(f"s_cbranch_vccz {lab}")
        gissue(GA)
        a.label(f"{name}_poll_l")
        gissue(GB)
        gcheck(GA, f"{name}_gdA")
        gissue(GA)
        gcheck(GB, f"{name}_gdB")
        a(f"s_cmp_lt_u32 s{s_spin}, {SPIN_MAX}")
        a(f"s_cbranch_scc1 {name}_poll_l")
        for (G, lab) in ((GB, "gdB"), (GA, "gdA"), (F, "gdone")):
            a.label(f"{name}_{lab}")
            a(f"ds_write_b128 v{v_w0}, {vr(G, 4)}")
            a(f"ds_write_b128 v{v_w1}, {vr(G+4, 4)}")
            a(f"s_cmp_ge_u32 s{s_w}, 2")
            a(f"s_cbranch_scc1 {name}_gw")
            a(f"ds_write_b128 v{v_w2}, {vr(G+8, 4)}")
            if lab != "gdone":
                a(f"s_branch {name}_gw")
        a.label(f"{name}_gw")
    a("s_waitcnt lgkmcnt(0)")
    a("s_barrier")
    stamp(2)
    Q0, Q1, K0, K1, VV = v_acc, v_acc + 4, v_acc + 8, v_acc + 12, v_acc + 16
    def qkv(kh):
        for ks in range(4):
            a(f"ds_read_b128 {vr(F + 4*ks, 4)}, v{v_fr} offset:{ks*64}")
        for ks in range(20):
            fb = F + 4 * (ks % 4)
            outstanding = min(3, 19 - ks)
            a(f"s_waitcnt lgkmcnt({outstanding})")
            c = lambda r: "0" if ks == 0 else vr(r, 4)
            a(f"v_mfma_f32_16x16x32_bf16 {vr(Q0,4)}, {wq(0,ks)}, {vr(fb,4)}, {c(Q0)}")
            a(f"v_mfma_f32_16x16x32_bf16 {vr(Q1,4)}, {wq(1,ks)}, {vr(fb,4)}, {c(Q1)}")
            a(f"v_mfma_f32_16x16x32_bf16 {vr(K0,4)}, {wk(0,ks)}, {vr(fb,4)}, {c(K0)}")
            a(f"v_mfma_f32_16x16x32_bf16 {vr(K1,4)}, {wk(1,ks)}, {vr(fb,4)}, {c(K1)}")
            if ks // 10 == kh:
                i = ks % 10
                a(f"v_mfma_f32_16x16x32_bf16 {vr(VV,4)}, {vr(fb,4)}, {wv(i)}, {'0' if i == 0 else vr(VV,4)}")
            if ks + 4 < 20:
                a(f"ds_read_b128 {vr(fb, 4)}, v{v_fr} offset:{(ks+4)*64}")
    a(f"s_cmp_ge_u32 s{s_w}, 2")
    a(f"s_cbranch_scc1 {name}_qkv1")
    qkv(0)
    a(f"s_branch {name}_qkvd")
    a.label(f"{name}_qkv1")
    qkv(1)
    a.label(f"{name}_qkvd")
    a("s_nop 7")
    a("s_nop 1")
    stamp(3)
    a(f"v_cvt_pk_bf16_f32 v{v_qf}, v{Q0}, v{Q0+1}")
    a(f"v_cvt_pk_bf16_f32 v{v_qf+1}, v{Q0+2}, v{Q0+3}")
    a(f"v_cvt_pk_bf16_f32 v{v_qf+2}, v{Q1}, v{Q1+1}")
    a(f"v_cvt_pk_bf16_f32 v{v_qf+3}, v{Q1+2}, v{Q1+3}")
    a(f"v_cvt_pk_bf16_f32 v{v_kf}, v{K0}, v{K0+1}")
    a(f"v_cvt_pk_bf16_f32 v{v_kf+1}, v{K0+2}, v{K0+3}")
    a(f"v_cvt_pk_bf16_f32 v{v_kf+2}, v{K1}, v{K1+1}")
    a(f"v_cvt_pk_bf16_f32 v{v_kf+3}, v{K1+2}, v{K1+3}")
    a("s_waitcnt vmcnt(0)")
    a(f"v_mfma_f32_16x16x32_bf16 {vr(v_s+4,4)}, {vr(v_ktk,4)}, {vr(v_qf,4)}, 0")
    a(f"s_cmp_lg_u32 s{s_w}, 3")
    a(f"s_cbranch_scc1 {name}_nopg")
    a(f"v_mov_b32 v{v_t}, s{s_step}")
    a(f"v_mov_b32 v{v_t2}, 0")
    a("s_mov_b64 exec, 1")
    a(f"global_store_dword v{v_t2}, v{v_t}, s[{S_PG}:{S_PG+1}] sc1")
    a("s_mov_b64 exec, -1")
    a.label(f"{name}_nopg")
    a(f"v_mfma_f32_16x16x32_bf16 {vr(v_s+8,4)}, {vr(v_ktk+4,4)}, {vr(v_qf,4)}, 0")
    a(f"v_mfma_f32_16x16x32_bf16 {vr(v_s,4)}, {vr(v_kf,4)}, {vr(v_qf,4)}, 0")
    a(f"s_mov_b64 exec, s[{S_MG2}:{S_MG2+1}]")
    a(f"ds_write_b128 v{v_vpw}, {vr(VV,4)}")
    a(f"s_mov_b64 exec, s[{S_MN8}:{S_MN8+1}]")
    a(f"s_cmp_lg_u32 s{s_w}, s{s_j}")
    a(f"s_cbranch_scc1 {name}_nok")
    a(f"s_lshl_b32 s{s_t0}, s{s_step}, 16")
    a(f"s_add_u32 s{S_TB}, s{S_KM}, s{s_t0}")
    a(f"s_addc_u32 s{S_TB+1}, s{S_KM+1}, 0")
    a(f"global_store_dwordx2 v{v_km}, {vr(v_kf,2)}, s[{S_TB}:{S_TB+1}] sc1")
    a(f"global_store_dwordx2 v{v_km}, {vr(v_kf+2,2)}, s[{S_TB}:{S_TB+1}] offset:32 sc1")
    a.label(f"{name}_nok")
    a("s_nop 7")
    a(f"ds_write_b128 v{v_spw}, {vr(v_s+4,4)} offset:64")
    a(f"ds_write_b128 v{v_spw}, {vr(v_s+8,4)} offset:128")
    a(f"ds_write_b128 v{v_spw}, {vr(v_s,4)}")
    a("s_mov_b64 exec, -1")
    a("s_waitcnt lgkmcnt(0)")
    a("s_barrier")
    stamp(4)
    B = v_big
    for tv in range(2):
        for kh in range(2):
            a(f"ds_read_b128 {vr(F + (tv*2+kh)*4, 4)}, v{v_vpr} offset:{(kh*2+tv)*512}")
    for wv_ in range(4):
        for t in range(3):
            dst = v_s + 4 * t if wv_ == 0 else v_stmp + ((wv_ - 1) * 3 + t) * 4
            a(f"ds_read_b128 {vr(dst, 4)}, v{v_spr} offset:{wv_*8*SPSTRIDE + t*64}")
    a("s_waitcnt lgkmcnt(12)")
    for tv in range(2):
        for r in range(4):
            a(f"v_add_f32 v{F + tv*8 + r}, v{F + tv*8 + r}, v{F + tv*8 + 4 + r}")
        a(f"v_cvt_pk_bf16_f32 v{v_vf + 2*tv}, v{F + tv*8}, v{F + tv*8 + 1}")
        a(f"v_cvt_pk_bf16_f32 v{v_vf + 2*tv + 1}, v{F + tv*8 + 2}, v{F + tv*8 + 3}")
    a(f"s_cmp_lg_u32 s{s_w}, 0")
    a(f"s_cbranch_scc1 {name}_nov")
    a(f"s_lshl_b32 s{s_t0}, s{s_step}, 16")
    a(f"s_add_u32 s{S_TB}, s{S_VM}, s{s_t0}")
    a(f"s_addc_u32 s{S_TB+1}, s{S_VM+1}, 0")
    a(f"s_mov_b64 exec, s[{S_MG2}:{S_MG2+1}]")
    a(f"global_store_dwordx2 v{v_vm}, {vr(v_vf,2)}, s[{S_TB}:{S_TB+1}] sc1")
    a(f"global_store_dwordx2 v{v_vm}, {vr(v_vf+2,2)}, s[{S_TB}:{S_TB+1}] offset:256 sc1")
    a("s_mov_b64 exec, -1")
    a.label(f"{name}_nov")
    a(f"s_cmp_ge_u32 s{s_step}, {nsteps-1}")
    a(f"s_cbranch_scc1 {name}_fin")
    a("s_waitcnt lgkmcnt(0)")
    T = v_stmp
    for i in range(12):
        a(f"v_add_f32 v{T+i}, v{T+i}, v{T+12+i}")
        a(f"v_add_f32 v{v_s+i}, v{v_s+i}, v{T+24+i}")
    for i in range(12):
        a(f"v_add_f32 v{v_s+i}, v{v_s+i}, v{T+i}")
    m = v_t; m2 = v_t2
    a(f"v_max3_f32 v{m}, v{v_s}, v{v_s+1}, v{v_s+2}")
    a(f"v_max3_f32 v{m2}, v{v_s+3}, v{v_s+4}, v{v_s+5}")
    a(f"v_max3_f32 v{m}, v{v_s+6}, v{v_s+7}, v{m}")
    a(f"v_max3_f32 v{m2}, v{v_s+8}, v{v_s+9}, v{m2}")
    a(f"v_max3_f32 v{m}, v{v_s+10}, v{v_s+11}, v{m}")
    a(f"v_max_f32 v{m}, v{m}, v{m2}")
    a(f"v_mov_b32 v{m2}, v{m}")
    a("s_nop 1")
    a(f"v_permlane16_swap_b32 v{m}, v{m2}")
    a(f"v_max_f32 v{m}, v{m}, v{m2}")
    a(f"v_mov_b32 v{m2}, v{m}")
    a("s_nop 1")
    a(f"v_permlane32_swap_b32 v{m}, v{m2}")
    a(f"v_max_f32 v{m}, v{m}, v{m2}")
    a(f"v_mul_f32 v{m}, s{s_c}, v{m}")
    for i in range(12):
        a(f"v_fma_f32 v{v_s+i}, v{v_s+i}, s{s_c}, -v{m}")
    for i in range(12):
        a(f"v_exp_f32 v{v_s+i}, v{v_s+i}")
    a("s_nop 0")
    for i in range(4):
        a(f"v_cndmask_b32 v{v_s+i}, 0, v{v_s+i}, s[{S_MG2}:{S_MG2+1}]")
    a(f"v_add_f32 v{m}, v{v_s}, v{v_s+1}")
    a(f"v_add_f32 v{m2}, v{v_s+2}, v{v_s+3}")
    for i in range(4, 12, 2):
        a(f"v_add_f32 v{m}, v{m}, v{v_s+i}")
        a(f"v_add_f32 v{m2}, v{m2}, v{v_s+i+1}")
    a(f"v_add_f32 v{m}, v{m}, v{m2}")
    a(f"v_mov_b32 v{m2}, v{m}")
    a("s_nop 1")
    a(f"v_permlane16_swap_b32 v{m}, v{m2}")
    a(f"v_add_f32 v{m}, v{m}, v{m2}")
    a(f"v_mov_b32 v{m2}, v{m}")
    a("s_nop 1")
    a(f"v_permlane32_swap_b32 v{m}, v{m2}")
    a(f"v_add_f32 v{m}, v{m}, v{m2}")
    a(f"v_rcp_f32 v{m}, v{m}")
    a("s_nop 0")
    for i in range(12):
        a(f"v_mul_f32 v{v_s+i}, v{v_s+i}, v{m}")
    for i in range(6):
        a(f"v_cvt_pk_bf16_f32 v{v_p+i}, v{v_s+2*i}, v{v_s+2*i+1}")
    a("s_nop 1")
    stamp(5)
    for tv in range(2):
        O = Q0 + 4 * tv
        a(f"v_mfma_f32_16x16x16_bf16 {vr(O,4)}, {vr(v_vf+2*tv,2)}, {vr(v_p,2)}, 0")
    for t in (1, 2):
        for tv in range(2):
            O = Q0 + 4 * tv
            a(f"v_mfma_f32_16x16x16_bf16 {vr(O,4)}, {vr(v_vtk + tv*4 + (t-1)*2,2)}, {vr(v_p+2*t,2)}, {vr(O,4)}")
    a("s_nop 7")
    a("s_nop 1")
    a(f"v_cvt_pk_bf16_f32 v{v_qf}, v{Q0}, v{Q0+1}")
    a(f"v_cvt_pk_bf16_f32 v{v_qf+1}, v{Q0+2}, v{Q0+3}")
    a(f"v_cvt_pk_bf16_f32 v{v_qf+2}, v{Q1}, v{Q1+1}")
    a(f"v_cvt_pk_bf16_f32 v{v_qf+3}, v{Q1+2}, v{Q1+3}")
    a(f"s_and_b32 s{s_t0}, s{s_step}, {RING-1}")
    a(f"s_mul_i32 s{s_t0}, s{s_t0}, {80*32768}")
    a(f"s_add_u32 s{S_PB}, s{S_PT}, s{s_t0}")
    a(f"s_addc_u32 s{S_PB+1}, s{S_PT+1}, 0")
    for t in range(10):
        a(f"v_mfma_f32_16x16x32_bf16 {vr(B+4*t,4)}, {wo(t)}, {vr(v_qf,4)}, 0")
    if not PACK:
        a(f"s_mov_b64 exec, s[{S_MN8}:{S_MN8+1}]")
        for t in range(10):
            if t == 0:
                a("s_nop 0")
                a(f"global_store_dwordx4 v{v_part}, {vr(B,4)}, s[{S_PB}:{S_PB+1}] sc1")
            else:
                tr = v_t if t % 2 else v_t2
                a(f"v_add_u32 v{tr}, {t*65536}, v{v_part}")
                a(f"global_store_dwordx4 v{tr}, {vr(B+4*t,4)}, s[{S_PB}:{S_PB+1}] sc1")
        a("s_mov_b64 exec, -1")
    else:
        for u in range(5):
            if u == 4:
                a("s_nop 7")
            for r in range(4):
                a(f"v_mov_b32_dpp v{B+8*u+r}, v{B+8*u+4+r} row_shr:8 row_mask:0xf bank_mask:0xc")
            if u == 0:
                a(f"global_store_dwordx4 v{v_part}, {vr(B,4)}, s[{S_PB}:{S_PB+1}] sc1")
            else:
                tr = v_t if u % 2 else v_t2
                a(f"v_add_u32 v{tr}, {u*131072}, v{v_part}")
                a(f"global_store_dwordx4 v{tr}, {vr(B+8*u,4)}, s[{S_PB}:{S_PB+1}] sc1")
    stamp(6)
    a("s_cmp_ge_u32 s2, 80")
    a(f"s_cbranch_scc1 {name}_next")
    a(f"s_lshl_b32 s{s_t0}, s2, 15")
    a(f"s_add_u32 s{S_TB}, s{S_PB}, s{s_t0}")
    a(f"s_addc_u32 s{S_TB+1}, s{S_PB+1}, 0")
    a(f"s_add_u32 s{S_TB2}, s{S_TB}, 16384")
    a(f"s_addc_u32 s{S_TB2+1}, s{S_TB+1}, 0")
    a(f"s_mov_b32 s{s_spin}, 0")
    a(f"v_add_u32 v{v_t3}, 8192+4096, v{v_g0}")
    if PRESLEEP: a(f"s_sleep {PRESLEEP}")
    offs = [v_g0, v_g1, v_g2, v_t3]
    if not (PP & 2):
        a.label(f"{name}_rpoll")
        offs = [v_g0, v_g1, v_g2, v_t3]
        for i in range(8):
            sb = S_TB if i < 4 else S_TB2
            a(f"global_load_dwordx4 {vr(B+4*i,4)}, v{offs[i%4]}, s[{sb}:{sb+1}] sc1")
        a(f"s_add_u32 s{s_spin}, s{s_spin}, 1")
        a("s_waitcnt vmcnt(0)")
        a(f"v_max3_u32 v{v_t}, v{B}, v{B+1}, v{B+2}")
        a(f"v_max3_u32 v{v_t2}, v{B+3}, v{B+4}, v{B+5}")
        for i in range(6, 30, 4):
            a(f"v_max3_u32 v{v_t}, v{B+i}, v{B+i+1}, v{v_t}")
            a(f"v_max3_u32 v{v_t2}, v{B+i+2}, v{B+i+3}, v{v_t2}")
        a(f"v_max3_u32 v{v_t}, v{B+30}, v{B+31}, v{v_t}")
        a(f"v_max_u32 v{v_t}, v{v_t}, v{v_t2}")
        a(f"v_cmp_eq_u32 vcc, -1, v{v_t}")
        a(f"s_cmp_ge_u32 s{s_spin}, {SPIN_MAX}")
        a(f"s_cbranch_scc1 {name}_rdone")
        if POLLSLEEP: a(f"s_sleep {POLLSLEEP}")
        a(f"s_cbranch_vccnz {name}_rpoll")
        a.label(f"{name}_rdone")
        stamp(7)
        for lvl in (16, 8, 4):
            for i in range(lvl):
                a(f"v_add_f32 v{B+i}, v{B+i}, v{B+lvl+i}")
    else:
        RA, RB = B, B + 32
        def rissue(R):
            for i in range(8):
                sb = S_TB if i < 4 else S_TB2
                a(f"global_load_dwordx4 {vr(R+4*i,4)}, v{offs[i%4]}, s[{sb}:{sb+1}] sc1")
        def rcheck(R, lab):
            a("s_waitcnt vmcnt(8)")
            a(f"v_max3_u32 v{v_t}, v{R}, v{R+1}, v{R+2}")
            a(f"v_max3_u32 v{v_t2}, v{R+3}, v{R+4}, v{R+5}")
            for i in range(6, 30, 4):
                a(f"v_max3_u32 v{v_t}, v{R+i}, v{R+i+1}, v{v_t}")
                a(f"v_max3_u32 v{v_t2}, v{R+i+2}, v{R+i+3}, v{v_t2}")
            a(f"v_max3_u32 v{v_t}, v{R+30}, v{R+31}, v{v_t}")
            a(f"v_max_u32 v{v_t}, v{v_t}, v{v_t2}")
            a(f"v_cmp_eq_u32 vcc, -1, v{v_t}")
            a(f"s_add_u32 s{s_spin}, s{s_spin}, 1")
            a(f"s_cbranch_vccz {lab}")
        RS = v_s + 4
        assert RB + 32 <= RS
        rissue(RA)
        a.label(f"{name}_rpoll")
        rissue(RB)
        rcheck(RA, f"{name}_rdA")
        rissue(RA)
        rcheck(RB, f"{name}_rdB")
        a(f"s_cmp_lt_u32 s{s_spin}, {SPIN_MAX}")
        a(f"s_cbranch_scc1 {name}_rpoll")
        for (R, lab) in ((RB, "rdB"), (RA, "rdA")):
            a.label(f"{name}_{lab}")
            for i in range(16):
                a(f"v_add_f32 v{RS+i}, v{R+i}, v{R+16+i}")
            if lab == "rdB":
                a(f"s_branch {name}_rsum")
        a.label(f"{name}_rsum")
        for lvl in (8, 4):
            for i in range(lvl):
                a(f"v_add_f32 v{RS+i}, v{RS+i}, v{RS+lvl+i}")
        a(f"ds_write_b128 v{v_redw}, {vr(RS,4)}")
        a("s_waitcnt vmcnt(0)")
    if not (PP & 2):
        a(f"ds_write_b128 v{v_redw}, {vr(B,4)}")
    a("s_waitcnt lgkmcnt(0)")
    a("s_barrier")
    if not PUB4:
        a(f"s_cmp_lg_u32 s{s_w}, 0")
        a(f"s_cbranch_scc1 {name}_rclr")
        for i in range(16):
            a(f"ds_read_b64 {vr(B+2*i,2)}, v{v_redr} offset:{i*256}")
        a(f"s_add_u32 s{s_t0}, s{s_step}, 1")
        a(f"s_mul_i32 s{s_t0}, s{s_t0}, {RC*10240}")
        a(f"s_add_u32 s{S_TB2}, s{S_MB}, s{s_t0}")
        a(f"s_addc_u32 s{S_TB2+1}, s{S_MB+1}, 0")
        a("s_waitcnt lgkmcnt(0)")
        for lvl in (16, 8, 4, 2):
            for i in range(lvl):
                a(f"v_add_f32 v{B+i}, v{B+i}, v{B+lvl+i}")
        a(f"v_cvt_pk_bf16_f32 v{B}, v{B}, v{B+1}")
        a("s_mov_b32 exec_lo, -1")
        a("s_mov_b32 exec_hi, 0")
        for c in range(RC):
            if c * 10240 < 4096:
                a(f"global_store_dword v{v_pub}, v{B}, s[{S_TB2}:{S_TB2+1}] offset:{c*10240} sc1")
            else:
                a(f"v_add_u32 v{v_t}, {c*10240}, v{v_pub}")
                a(f"global_store_dword v{v_t}, v{B}, s[{S_TB2}:{S_TB2+1}] sc1")
        a("s_mov_b64 exec, -1")
    else:
        for i in range(16):
            a(f"ds_read_b64 {vr(B+2*i,2)}, v{v_redr} offset:{i*256}")
        a(f"s_add_u32 s{s_t0}, s{s_step}, 1")
        a(f"s_mul_i32 s{s_t0}, s{s_t0}, {RC*10240}")
        a(f"s_mul_i32 s{s_t1}, s{s_w}, {RC//4*10240}")
        a(f"s_add_u32 s{s_t0}, s{s_t0}, s{s_t1}")
        a(f"s_add_u32 s{S_TB2}, s{S_MB}, s{s_t0}")
        a(f"s_addc_u32 s{S_TB2+1}, s{S_MB+1}, 0")
        a("s_waitcnt lgkmcnt(0)")
        for lvl in (16, 8, 4, 2):
            for i in range(lvl):
                a(f"v_add_f32 v{B+i}, v{B+i}, v{B+lvl+i}")
        a(f"v_cvt_pk_bf16_f32 v{B}, v{B}, v{B+1}")
        a("s_mov_b32 exec_lo, -1")
        a("s_mov_b32 exec_hi, 0")
        a(f"global_store_dword v{v_pub}, v{B}, s[{S_TB2}:{S_TB2+1}] sc1")
        for c in range(1, RC // 4):
            a(f"v_add_u32 v{v_t}, {c*10240}, v{v_pub}")
            a(f"global_store_dword v{v_t}, v{B}, s[{S_TB2}:{S_TB2+1}] sc1")
        a("s_mov_b64 exec, -1")
    a.label(f"{name}_rclr")
    stamp(8)
    a(f"s_add_u32 s{S_TB2}, s{S_TB}, 16384")
    a(f"s_addc_u32 s{S_TB2+1}, s{S_TB+1}, 0")
    for i in range(4):
        a(f"v_mov_b32 v{B+36+i}, -1")
    for i in range(8):
        sb = S_TB if i < 4 else S_TB2
        a(f"global_store_dwordx4 v{offs[i%4]}, {vr(B+36,4)}, s[{sb}:{sb+1}] sc1")
    a.label(f"{name}_next")
    if prof:
        stamp(9)
        a(f"s_cmp_lg_u32 s{s_w}, 0")
        a(f"s_cbranch_scc1 {name}_nost")
        a(f"s_lshl_b32 s{s_t0}, s2, 6")
        a(f"s_add_u32 s{s_t0}, s{s_t0}, s{s_step}")
        a(f"s_lshl_b32 s{s_t0}, s{s_t0}, 7")
        a(f"s_add_u32 s{s_t0}, s{s_t0}, {120*MB}")
        a(f"s_add_u32 s{S_TB}, s{S_WS}, s{s_t0}")
        a(f"s_addc_u32 s{S_TB+1}, s{S_WS+1}, 0")
        a(f"v_mov_b32 v{v_t3}, 0")
        for i in range(NST):
            a(f"v_mov_b32 v{v_t}, s{64+2*i}")
            a(f"global_store_dword v{v_t3}, v{v_t}, s[{S_TB}:{S_TB+1}] offset:{i*4}")
            a("s_nop 2")
        a.label(f"{name}_nost")
    a(f"s_add_u32 s{s_step}, s{s_step}, 1")
    a(f"s_branch {name}_loop")
    a.label(f"{name}_fin")
    a("s_waitcnt vmcnt(0) lgkmcnt(0)")
    a("s_barrier")
    a(f"s_cmp_lg_u32 s{s_w}, 0")
    a(f"s_cbranch_scc1 {name}_end")
    a(f"v_mov_b32 v{v_t}, {nsteps}")
    a(f"v_mov_b32 v{v_t2}, 0")
    a("s_mov_b64 exec, 1")
    a(f"global_store_dword v{v_t2}, v{v_t}, s[{S_PG}:{S_PG+1}] sc1")
    a("s_waitcnt vmcnt(0)")
    a.label(f"{name}_end")
    a("s_endpgm")
```

```python
from gen_common import *
from m_sync import *
import struct
def f32bits(x):
    return struct.unpack("<I", struct.pack("<f", x))[0]
SCALE_LOG2E = 128 ** -0.5 * 1.4426950408889634
NSEGJ = 28

def gen_clear_body(a, name, nwg=128):
    v_t, v_e = 1, 4
    S_WS, S_OB, s_t0, s_w = 6, 8, 10, 3
    a("s_load_dwordx2 s[6:7], s[0:1], 112")
    a(f"s_load_dwordx2 s[{S_DBGW}:{S_DBGW+1}], s[0:1], 104")
    a(f"v_lshrrev_b32 v{v_t}, 6, v0")
    for i in range(4):
        a(f"v_mov_b32 v{v_e+i}, -1")
    a(f"v_readfirstlane_b32 s{s_w}, v{v_t}")
    a("s_waitcnt lgkmcnt(0)")
    for (base, nbytes) in ((WS_MEMB, MEMB_BYTES), (WS_PART, PART_BYTES)):
        per = nbytes // (nwg * 4096)
        assert per * nwg * 4096 == nbytes
        a(f"s_mul_i32 s{s_t0}, s{S_WID}, {per*4096}")
        a(f"s_add_u32 s{s_t0}, s{s_t0}, {base}")
        a(f"s_add_u32 s{S_OB}, s{S_WS}, s{s_t0}")
        a(f"s_addc_u32 s{S_OB+1}, s{S_WS+1}, 0")
        a(f"v_lshlrev_b32 v{v_t}, 4, v0")
        for i in range(per):
            a(f"global_store_dwordx4 v{v_t}, {vr(v_e,4)}, s[{S_OB}:{S_OB+1}] sc1")
            a(f"v_add_u32 v{v_t}, 4096, v{v_t}")
    a(f"s_lshl_b32 s{s_t0}, s{S_WID}, 2")
    a(f"s_add_u32 s{s_t0}, s{s_t0}, {WS_PROG}")
    a(f"s_add_u32 s{S_OB}, s{S_WS}, s{s_t0}")
    a(f"s_addc_u32 s{S_OB+1}, s{S_WS+1}, 0")
    a(f"v_mov_b32 v{v_t}, 0")
    a(f"s_cmp_lg_u32 s{s_w}, 0")
    a(f"s_cbranch_scc1 {name}_np")
    a("s_mov_b64 exec, 1")
    a(f"global_store_dword v{v_t}, v{v_t}, s[{S_OB}:{S_OB+1}] sc1")
    a("s_mov_b64 exec, -1")
    a.label(f"{name}_np")
    a("s_waitcnt vmcnt(0)")
    a("s_barrier")
    a(f"s_mov_b32 s{s_t0}, 64")
    signal_dbg(a, name + "_sg", s_t0, 1, v_e, v_e + 1, s_w)

def gen_gate_body(a, name):
    v_l, v_t, v_t2, v_o = 1, 2, 3, 4
    v_x = 8; v_gw = 16; v_r = 24; v_res = 30
    s_w, s_tok, s_i, s_t0 = 3, 4, 5, 14
    a("s_load_dwordx2 s[6:7], s[0:1], 0")
    a("s_load_dwordx2 s[8:9], s[0:1], 88")
    a("s_load_dwordx2 s[12:13], s[0:1], 112")
    a(f"v_lshrrev_b32 v{v_t}, 6, v0")
    a(f"v_and_b32 v{v_l}, 63, v0")
    a(f"v_readfirstlane_b32 s{s_w}, v{v_t}")
    a(f"s_sub_u32 s{s_tok}, s{S_WID}, 80")
    a(f"s_lshl_b32 s{s_tok}, s{s_tok}, 2")
    a(f"s_add_u32 s{s_tok}, s{s_tok}, s{s_w}")
    a(f"s_lshl_b32 s{s_tok}, s{s_tok}, 5")
    a(f"v_lshlrev_b32 v{v_o}, 2, v{v_l}")
    a("s_waitcnt lgkmcnt(0)")
    for i in range(5):
        a(f"global_load_dword v{v_gw+i}, v{v_o}, s[8:9] offset:{i*256}")
    a(f"s_mul_i32 s{s_t0}, s{s_tok}, 1280")
    a(f"s_add_u32 s6, s6, s{s_t0}"); a("s_addc_u32 s7, s7, 0")
    a(f"s_mov_b32 s{s_i}, 0")
    a(f"v_mov_b32 v{v_res}, 0")
    a.label(f"{name}_l")
    for i in range(5):
        a(f"global_load_dword v{v_x+i}, v{v_o}, s[6:7] offset:{i*256}")
    a("s_add_u32 s6, s6, 1280"); a("s_addc_u32 s7, s7, 0")
    a("s_waitcnt vmcnt(0)")
    a(f"v_mov_b32 v{v_t}, 0")
    for i in range(5):
        a(f"v_lshlrev_b32 v{v_r}, 16, v{v_x+i}")
        a(f"v_lshlrev_b32 v{v_r+1}, 16, v{v_gw+i}")
        a(f"v_and_b32 v{v_r+2}, 0xffff0000, v{v_x+i}")
        a(f"v_and_b32 v{v_r+3}, 0xffff0000, v{v_gw+i}")
        a(f"v_mul_f32 v{v_r}, v{v_r}, v{v_r+1}")
        a(f"v_mul_f32 v{v_r+2}, v{v_r+2}, v{v_r+3}")
        a(f"v_cvt_pk_bf16_f32 v{v_r}, v{v_r}, v{v_r+2}")
        a(f"v_lshlrev_b32 v{v_r+1}, 16, v{v_r}")
        a(f"v_and_b32 v{v_r}, 0xffff0000, v{v_r}")
        a(f"v_add_f32 v{v_t}, v{v_t}, v{v_r+1}")
        a(f"v_add_f32 v{v_t}, v{v_t}, v{v_r}")
    for off in (0x041F, 0x081F, 0x101F, 0x201F):
        a(f"ds_swizzle_b32 v{v_t2}, v{v_t} offset:{off}")
        a("s_waitcnt lgkmcnt(0)")
        a(f"v_add_f32 v{v_t}, v{v_t}, v{v_t2}")
    for op in ("v_permlane16_swap_b32", "v_permlane32_swap_b32"):
        a(f"v_mov_b32 v{v_t2}, v{v_t}")
        a("s_nop 1")
        a(f"{op} v{v_t}, v{v_t2}")
        a(f"v_add_f32 v{v_t}, v{v_t}, v{v_t2}")
    a(f"v_cvt_pk_bf16_f32 v{v_t}, v{v_t}, v{v_t}")
    a(f"v_lshlrev_b32 v{v_t}, 16, v{v_t}")
    a(f"v_mul_f32 v{v_t}, 0x{f32bits(-1.4426950408889634):08x}, v{v_t}")
    a(f"v_exp_f32 v{v_t}, v{v_t}")
    a("s_nop 0")
    a(f"v_add_f32 v{v_t}, 1.0, v{v_t}")
    a(f"v_rcp_f32 v{v_t}, v{v_t}")
    a("s_nop 0")
    a(f"v_cvt_pk_bf16_f32 v{v_t}, v{v_t}, v{v_t}")
    a(f"v_lshlrev_b32 v{v_t}, 16, v{v_t}")
    a(f"v_cmp_eq_u32 vcc, s{s_i}, v{v_l}")
    a(f"v_cndmask_b32 v{v_res}, v{v_res}, v{v_t}, vcc")
    a(f"s_add_u32 s{s_i}, s{s_i}, 1")
    a(f"s_cmp_lt_u32 s{s_i}, 32")
    a(f"s_cbranch_scc1 {name}_l")
    a(f"s_lshl_b32 s{s_t0}, s{s_tok}, 2")
    a(f"s_add_u32 s{s_t0}, s{s_t0}, {WS_G}")
    a(f"s_add_u32 s12, s12, s{s_t0}"); a("s_addc_u32 s13, s13, 0")
    a("s_mov_b32 exec_lo, -1")
    a("s_mov_b32 exec_hi, 0")
    a(f"global_store_dword v{v_o}, v{v_res}, s[12:13] sc1")
    a("s_mov_b64 exec, -1")
    a("s_waitcnt vmcnt(0)")
    a("s_barrier")
    a(f"s_sub_u32 s{s_t0}, s{S_WID}, 80")
    a(f"s_lshl_b32 s{s_t0}, s{s_t0}, 2")
    signal_dbg(a, name + "_sg", s_t0, 1 << 24, v_t, v_t2, s_w)

def gen_tail_body(a, name, nwg=128, TL=0, ONC=0):
    OSC = "" if ONC else " sc1"
    V = Alloc(1, 256)
    v_n = V.get("n"); v_g = V.get("g"); v_l = V.get("l")
    v_t = V.get("t"); v_t2 = V.get("t2"); v_t3 = V.get("t3"); v_t4 = V.get("t4")
    v_qo = V.get("qo"); v_mo = V.get("mo"); v_vo = V.get("vo"); v_vmo = V.get("vmo")
    v_bo = V.get("bo"); v_tr = V.get("tr"); v_rw = V.get("rw"); v_rr = V.get("rr"); v_oo = V.get("oo")
    v_bb = V.get("bb", 2, 2); v_gg = V.get("gg")
    base = (V.next + 3) // 4 * 4
    v_q = base; v_k = v_q + 32; v_v = v_k + 48; v_s = v_v + 48; v_p = v_s + 20
    v_o = v_q
    v_A = base; v_acc = v_A + 192
    assert v_acc + 16 <= 256 and v_p + 10 <= 256
    s_w, s_s, s_h = 3, 4, 5
    S_WS, S_B, S_B2 = 6, 8, 10
    s_t0, s_t1, s_c, s_t2 = 12, 13, 14, 15
    S_MG2, S_D = 16, 18
    s_e, s_i, s_spin, s_sh = 26, 27, 28, 29
    S_OUT, S_WO, SRD = 30, 32, 36
    s_so = 40; s_lb = 41
    a("s_load_dwordx2 s[6:7], s[0:1], 112")
    a("s_load_dwordx2 s[30:31], s[0:1], 96")
    a("s_load_dwordx2 s[32:33], s[0:1], 40")
    a(f"v_lshrrev_b32 v{v_t}, 6, v0")
    a(f"v_and_b32 v{v_l}, 63, v0")
    a(f"v_readfirstlane_b32 s{s_w}, v{v_t}")
    a(f"v_and_b32 v{v_n}, 15, v0")
    a(f"v_lshrrev_b32 v{v_g}, 4, v{v_l}")
    a(f"v_cmp_gt_u32 s[{S_MG2}:{S_MG2+1}], 2, v{v_g}")
    a(f"v_lshlrev_b32 v{v_t}, 2, v{v_g}")
    for r in range(4):
        a(f"v_add_u32 v{v_t2}, {r}, v{v_t}")
        a(f"v_cmp_le_u32 s[{S_D+2*r}:{S_D+2*r+1}], v{v_t2}, v{v_n}")
    a(f"v_lshlrev_b32 v{v_qo}, 13, v{v_n}")
    a(f"v_lshl_add_u32 v{v_qo}, v{v_g}, 4, v{v_qo}")
    a(f"v_and_b32 v{v_t}, 7, v{v_n}")
    a(f"v_lshlrev_b32 v{v_mo}, 13, v{v_t}")
    a(f"v_lshl_add_u32 v{v_mo}, v{v_g}, 4, v{v_mo}")
    a(f"v_lshlrev_b32 v{v_vo}, 12, v{v_n}")
    a(f"v_lshl_add_u32 v{v_vo}, v{v_g}, 3, v{v_vo}")
    a(f"v_and_b32 v{v_t}, 1, v{v_g}")
    a(f"v_lshlrev_b32 v{v_vmo}, 4, v{v_n}")
    a(f"v_lshl_add_u32 v{v_vmo}, v{v_t}, 3, v{v_vmo}")
    a(f"s_mov_b32 s{s_c}, {f32bits(SCALE_LOG2E)}")
    a(f"v_lshrrev_b32 v{v_t}, 2, v{v_l}")
    a(f"v_mul_u32_u24 v{v_bo}, 1280, v{v_t}")
    a(f"v_and_b32 v{v_t2}, 3, v{v_l}")
    a(f"v_lshl_add_u32 v{v_bo}, v{v_t2}, 4, v{v_bo}")
    a(f"v_lshrrev_b32 v{v_t}, 2, v{v_n}")
    a(f"v_lshl_add_u32 v{v_t}, v{v_g}, 3, v{v_t}")
    a(f"v_lshlrev_b32 v{v_tr}, 6, v{v_t}")
    a(f"v_lshl_add_u32 v{v_tr}, v{v_t2}, 3, v{v_tr}")
    a(f"s_lshl_b32 s{s_lb}, s{s_w}, 15")
    a(f"v_add_u32 v{v_tr}, s{s_lb}, v{v_tr}")
    a(f"v_lshlrev_b32 v{v_rw}, 4, v{v_l}")
    a(f"s_lshl_b32 s{s_t0}, s{s_w}, 10")
    a(f"v_add_u32 v{v_rr}, s{s_t0}, v{v_rw}")
    a(f"v_add_u32 v{v_rw}, s{s_lb}, v{v_rw}")
    a(f"v_mul_u32_u24 v{v_oo}, 1280, v{v_n}")
    a(f"v_lshl_add_u32 v{v_oo}, v{v_g}, 3, v{v_oo}")
    a(f"s_lshr_b32 s{s_t0}, s{s_w}, 1")
    a(f"s_mul_i32 s{s_t0}, s{s_t0}, {16*1280}")
    a(f"s_and_b32 s{s_t1}, s{s_w}, 1")
    a(f"s_lshl_b32 s{s_t1}, s{s_t1}, 5")
    a(f"s_add_u32 s{s_t0}, s{s_t0}, s{s_t1}")
    a(f"v_add_u32 v{v_oo}, s{s_t0}, v{v_oo}")
    a("s_waitcnt lgkmcnt(0)")
    a(f"s_mov_b32 s{SRD}, s{S_WO}")
    a(f"s_and_b32 s{SRD+1}, s{S_WO+1}, 0xffff")
    a(f"s_mov_b32 s{SRD+2}, {4096*1280}")
    a(f"s_mov_b32 s{SRD+3}, 0x00020000")
    a(f"s_mov_b32 s{s_t0}, 64")
    poll_dbg(a, name + "_cw", s_t0, 0, 128, v_t, v_t2, s_t1, s_t2, s_w)
    a(f"s_cmp_lt_u32 s{S_WID}, 80")
    a(f"s_cbranch_scc1 {name}_wo_init")
    a(f"s_sub_u32 s{s_e}, s{S_WID}, 80")
    a.label(f"{name}_loop")
    a(f"s_lshr_b32 s{s_s}, s{s_e}, 3")
    a(f"s_and_b32 s{s_i}, s{s_e}, 7")
    a(f"s_lshr_b32 s{s_t0}, s{s_s}, 2")
    a(f"s_lshl_b32 s{s_t0}, s{s_t0}, 2")
    poll_dbg(a, name + "_a1", s_t0, 0, 64, v_t, v_t2, s_t1, s_t2, s_w)
    poll_dbg(a, name + "_a2", s_t0, 8, 32, v_t, v_t2, s_t1, s_t2, s_w)
    a(f"s_lshl_b32 s{s_h}, s{s_i}, 2")
    a(f"s_add_u32 s{s_h}, s{s_h}, s{s_w}")
    a(f"s_lshl_b32 s{s_t0}, s{s_s}, 18")
    a(f"s_lshl_b32 s{s_t1}, s{s_h}, 8")
    a(f"s_add_u32 s{s_t0}, s{s_t0}, s{s_t1}")
    a(f"s_add_u32 s{S_B}, s{S_WS}, s{s_t0}")
    a(f"s_addc_u32 s{S_B+1}, s{S_WS+1}, 0")
    a(f"s_add_u32 s{S_B2}, s{S_B}, {WS_K}")
    a(f"s_addc_u32 s{S_B2+1}, s{S_B+1}, 0")
    a(f"v_add_u32 v{v_t}, 0x20000, v{v_qo}")
    for qt in range(2):
        for ks in range(4):
            a(f"global_load_dwordx4 {vr(v_q + (qt*4+ks)*4, 4)}, v{v_qo if qt == 0 else v_t}, s[{S_B}:{S_B+1}] offset:{ks*64} sc1")
    for t in (1, 2):
        for ks in range(4):
            a(f"global_load_dwordx4 {vr(v_k + (t*4+ks)*4, 4)}, v{v_qo if t == 1 else v_t}, s[{S_B2}:{S_B2+1}] offset:{ks*64} sc1")
    a(f"s_lshl_b32 s{s_t0}, s{s_h}, 19")
    a(f"s_lshl_b32 s{s_t1}, s{s_s}, 6")
    a(f"s_add_u32 s{s_t0}, s{s_t0}, s{s_t1}")
    a(f"s_add_u32 s{s_t0}, s{s_t0}, {WS_VT}")
    a(f"s_add_u32 s{S_B}, s{S_WS}, s{s_t0}")
    a(f"s_addc_u32 s{S_B+1}, s{S_WS+1}, 0")
    for dt in range(8):
        if dt: a(f"v_add_u32 v{v_t}, {dt*65536}, v{v_vo}")
        for t in (1, 2):
            a(f"global_load_dwordx2 {vr(v_v + (dt*3+t)*2, 2)}, v{v_vo if dt == 0 else v_t}, s[{S_B}:{S_B+1}] offset:{(t-1)*32} sc1")
    a(f"s_cmp_lg_u32 s{s_w}, 0")
    a(f"s_cbranch_scc1 {name}_pd")
    a(f"s_lshl_b32 s{s_t0}, s{s_i}, 6")
    a(f"s_add_u32 s{s_t0}, s{s_t0}, {WS_PROG}")
    a(f"s_add_u32 s{S_B}, s{S_WS}, s{s_t0}")
    a(f"s_addc_u32 s{S_B+1}, s{S_WS+1}, 0")
    a(f"v_lshlrev_b32 v{v_t2}, 2, v{v_n}")
    a(f"s_mov_b32 s{s_spin}, 0")
    a.label(f"{name}_pl")
    a(f"global_load_dword v{v_t}, v{v_t2}, s[{S_B}:{S_B+1}] sc1")
    a(f"s_add_u32 s{s_spin}, s{s_spin}, 1")
    a("s_waitcnt vmcnt(0)")
    a(f"v_cmp_ge_u32 vcc, s{s_s}, v{v_t}")
    a(f"s_cmp_ge_u32 s{s_spin}, {WSPIN}")
    a(f"s_cbranch_scc1 {name}_pd")
    a(f"s_cbranch_vccz {name}_pd")
    a("s_sleep 8")
    a(f"s_branch {name}_pl")
    a.label(f"{name}_pd")
    a("s_barrier")
    a(f"s_lshl_b32 s{s_t1}, s{s_h}, 8")
    a(f"s_lshl_b32 s{s_t0}, s{s_s}, 16")
    a(f"s_add_u32 s{s_t0}, s{s_t0}, s{s_t1}")
    a(f"s_add_u32 s{s_t0}, s{s_t0}, {WS_KMEM}")
    a(f"s_add_u32 s{S_B}, s{S_WS}, s{s_t0}")
    a(f"s_addc_u32 s{S_B+1}, s{S_WS+1}, 0")
    for ks in range(4):
        a(f"global_load_dwordx4 {vr(v_k + ks*4, 4)}, v{v_mo}, s[{S_B}:{S_B+1}] offset:{ks*64} sc1")
    a(f"s_lshl_b32 s{s_t0}, s{s_s}, 16")
    a(f"s_lshl_b32 s{s_t1}, s{s_h}, 11")
    a(f"s_add_u32 s{s_t0}, s{s_t0}, s{s_t1}")
    a(f"s_add_u32 s{s_t0}, s{s_t0}, {WS_VMEMT}")
    a(f"s_add_u32 s{S_B2}, s{S_WS}, s{s_t0}")
    a(f"s_addc_u32 s{S_B2+1}, s{S_WS+1}, 0")
    for dt in range(8):
        a(f"global_load_dwordx2 {vr(v_v + (dt*3)*2, 2)}, v{v_vmo}, s[{S_B2}:{S_B2+1}] offset:{dt*256} sc1")
    a("s_waitcnt vmcnt(8)")
    tiles = [(0, 0), (1, 0), (0, 1), (1, 1), (2, 1)]
    for ks in range(4):
        for i, (t, qt) in enumerate(tiles):
            acc = vr(v_s + 4*i, 4)
            a(f"v_mfma_f32_16x16x32_bf16 {acc}, {vr(v_k + (t*4+ks)*4,4)}, {vr(v_q + (qt*4+ks)*4,4)}, {'0' if ks == 0 else acc}")
    a("s_nop 7")
    a("s_nop 1")
    a(f"v_mov_b32 v{v_t4}, 0xff800000")
    for i in (1, 4):
        for r in range(4):
            a(f"v_cndmask_b32 v{v_s+4*i+r}, v{v_t4}, v{v_s+4*i+r}, s[{S_D+2*r}:{S_D+2*r+1}]")
    for qt, idx in ((0, [0, 1]), (1, [2, 3, 4])):
        regs = [v_s + 4*i + r for i in idx for r in range(4)]
        m = v_t; m2 = v_t2
        a(f"v_max3_f32 v{m}, v{regs[0]}, v{regs[1]}, v{regs[2]}")
        a(f"v_max3_f32 v{m2}, v{regs[3]}, v{regs[4]}, v{regs[5]}")
        a(f"v_max3_f32 v{m}, v{regs[6]}, v{regs[7]}, v{m}")
        if len(regs) > 8:
            a(f"v_max3_f32 v{m2}, v{regs[8]}, v{regs[9]}, v{m2}")
            a(f"v_max3_f32 v{m}, v{regs[10]}, v{regs[11]}, v{m}")
        a(f"v_max_f32 v{m}, v{m}, v{m2}")
        for op in ("v_permlane16_swap_b32", "v_permlane32_swap_b32"):
            a(f"v_mov_b32 v{m2}, v{m}")
            a("s_nop 1")
            a(f"{op} v{m}, v{m2}")
            a(f"v_max_f32 v{m}, v{m}, v{m2}")
        a(f"v_mul_f32 v{m}, s{s_c}, v{m}")
        for r in regs:
            a(f"v_fma_f32 v{r}, v{r}, s{s_c}, -v{m}")
        for r in regs:
            a(f"v_exp_f32 v{r}, v{r}")
        a("s_nop 0")
        for r in regs[:4]:
            a(f"v_cndmask_b32 v{r}, 0, v{r}, s[{S_MG2}:{S_MG2+1}]")
        a(f"v_add_f32 v{m}, v{regs[0]}, v{regs[1]}")
        a(f"v_add_f32 v{m2}, v{regs[2]}, v{regs[3]}")
        for i in range(4, len(regs), 2):
            a(f"v_add_f32 v{m}, v{m}, v{regs[i]}")
            a(f"v_add_f32 v{m2}, v{m2}, v{regs[i+1]}")
        a(f"v_add_f32 v{m}, v{m}, v{m2}")
        for op in ("v_permlane16_swap_b32", "v_permlane32_swap_b32"):
            a(f"v_mov_b32 v{m2}, v{m}")
            a("s_nop 1")
            a(f"{op} v{m}, v{m2}")
            a(f"v_add_f32 v{m}, v{m}, v{m2}")
        a(f"v_rcp_f32 v{m}, v{m}")
        a("s_nop 0")
        for r in regs:
            a(f"v_mul_f32 v{r}, v{r}, v{m}")
    for i in range(5):
        a(f"v_cvt_pk_bf16_f32 v{v_p+2*i}, v{v_s+4*i}, v{v_s+4*i+1}")
        a(f"v_cvt_pk_bf16_f32 v{v_p+2*i+1}, v{v_s+4*i+2}, v{v_s+4*i+3}")
    a("s_waitcnt vmcnt(0)")
    a("s_nop 0")
    for i, (t, qt) in enumerate(tiles):
        for dt in range(8):
            acc = vr(v_o + (qt*8+dt)*4, 4)
            a(f"v_mfma_f32_16x16x16_bf16 {acc}, {vr(v_v + (dt*3+t)*2,2)}, {vr(v_p+2*i,2)}, {'0' if t == 0 else acc}")
    a(f"s_lshl_b32 s{s_t0}, s{s_s}, 18")
    a(f"s_lshl_b32 s{s_t1}, s{s_h}, 8")
    a(f"s_add_u32 s{s_t0}, s{s_t0}, s{s_t1}")
    a(f"s_add_u32 s{s_t0}, s{s_t0}, {WS_O}")
    a(f"s_add_u32 s{S_B}, s{S_WS}, s{s_t0}")
    a(f"s_addc_u32 s{S_B+1}, s{S_WS+1}, 0")
    a(f"v_lshlrev_b32 v{v_t}, 13, v{v_n}")
    a(f"v_lshl_add_u32 v{v_t}, v{v_g}, 3, v{v_t}")
    a(f"v_add_u32 v{v_t2}, 0x20000, v{v_t}")
    a("s_nop 7")
    for qt in range(2):
        for dt in range(8):
            ac = v_o + (qt*8+dt)*4
            a(f"v_cvt_pk_bf16_f32 v{ac}, v{ac}, v{ac+1}")
            a(f"v_cvt_pk_bf16_f32 v{ac+1}, v{ac+2}, v{ac+3}")
            a(f"global_store_dwordx2 v{v_t if qt == 0 else v_t2}, {vr(ac,2)}, s[{S_B}:{S_B+1}] offset:{dt*32} sc1")
    a("s_waitcnt vmcnt(0)")
    a("s_barrier")
    a(f"s_lshr_b32 s{s_t0}, s{s_s}, 2")
    a(f"s_lshl_b32 s{s_t0}, s{s_t0}, 2")
    a(f"s_add_u32 s{s_t0}, s{s_t0}, 128")
    a(f"s_and_b32 s{s_t1}, s{s_s}, 3")
    a(f"s_lshl_b32 s{s_t1}, s{s_t1}, 3")
    a(f"s_lshl_b32 s{s_t1}, 1, s{s_t1}")
    signal_dbg(a, name + "_asg", s_t0, (s_t1,), v_t, v_t2, s_w)
    if TL: wstamp2(a, s_e, 48)
    a(f"s_add_u32 s{s_e}, s{s_e}, 48")
    a(f"s_cmp_lt_u32 s{s_e}, 512")
    a(f"s_cbranch_scc1 {name}_loop")
    a(f"s_branch {name}_done")
    a.label(f"{name}_wo_init")
    a(f"s_mul_i32 s{s_t0}, s{S_WID}, 3277")
    a(f"s_lshr_b32 s{s_s}, s{s_t0}, 16")
    a(f"s_mul_i32 s{s_t0}, s{s_s}, 20")
    a(f"s_sub_u32 s{s_i}, s{S_WID}, s{s_t0}")
    a(f"s_mul_i32 s{s_t2}, s{s_w}, {1024*1280}")
    a(f"s_lshl_b32 s{s_t1}, s{s_i}, 6")
    a(f"s_add_u32 s{s_t2}, s{s_t2}, s{s_t1}")
    for rnd in range(2):
        for i in range(32):
            a(f"s_add_u32 m0, s{s_lb}, {i*1024}")
            a(f"s_add_u32 s{s_t1}, s{s_t2}, {(rnd*512 + i*16)*1280}")
            a(f"buffer_load_dwordx4 v{v_bo}, s[{SRD}:{SRD+3}], s{s_t1} offen lds")
        a("s_waitcnt vmcnt(0)")
        for ks in range(16):
            for nt in range(2):
                r = ((rnd*16 + ks)*2 + nt)*4
                a(f"ds_read_b64_tr_b16 {ar(r,2)}, v{v_tr} offset:{ks*2048 + nt*32}")
                a(f"ds_read_b64_tr_b16 {ar(r+2,2)}, v{v_tr} offset:{ks*2048 + nt*32 + 256}")
        a("s_waitcnt lgkmcnt(0)")
    a.label(f"{name}_wo")
    a(f"s_lshr_b32 s{s_t0}, s{s_s}, 2")
    a(f"s_lshl_b32 s{s_t0}, s{s_t0}, 2")
    poll_dbg(a, name + "_w1", s_t0, 24, 6, v_t, v_t2, s_t1, s_t2, s_w)
    a(f"s_add_u32 s{s_t0}, s{s_t0}, 128")
    a(f"s_and_b32 s{s_sh}, s{s_s}, 3")
    a(f"s_lshl_b32 s{s_sh}, s{s_sh}, 3")
    poll_dbg(a, name + "_w2", s_t0, (s_sh,), 8, v_t, v_t2, s_t1, s_t2, s_w)
    a(f"s_mul_i32 s{s_t0}, s{s_s}, {32*1280}")
    a(f"s_lshl_b32 s{s_t1}, s{s_i}, 6")
    a(f"s_add_u32 s{s_so}, s{s_t0}, s{s_t1}")
    a(f"s_add_u32 s{s_t0}, s{s_so}, {WS_B}")
    a(f"s_add_u32 s{S_B}, s{S_WS}, s{s_t0}")
    a(f"s_addc_u32 s{S_B+1}, s{S_WS+1}, 0")
    a(f"global_load_dwordx2 {vr(v_bb,2)}, v{v_oo}, s[{S_B}:{S_B+1}] sc1")
    a(f"s_lshl_b32 s{s_t0}, s{s_s}, 7")
    a(f"s_lshr_b32 s{s_t1}, s{s_w}, 1")
    a(f"s_lshl_b32 s{s_t1}, s{s_t1}, 6")
    a(f"s_add_u32 s{s_t0}, s{s_t0}, s{s_t1}")
    a(f"s_add_u32 s{s_t0}, s{s_t0}, {WS_G}")
    a(f"s_add_u32 s{S_B}, s{S_WS}, s{s_t0}")
    a(f"s_addc_u32 s{S_B+1}, s{S_WS+1}, 0")
    a(f"v_lshlrev_b32 v{v_t}, 2, v{v_n}")
    a(f"global_load_dword v{v_gg}, v{v_t}, s[{S_B}:{S_B+1}] sc1")
    a(f"s_lshl_b32 s{s_t0}, s{s_s}, 18")
    a(f"s_lshl_b32 s{s_t1}, s{s_w}, 11")
    a(f"s_add_u32 s{s_t0}, s{s_t0}, s{s_t1}")
    a(f"s_add_u32 s{s_t0}, s{s_t0}, {WS_O}")
    a(f"s_add_u32 s{S_B}, s{S_WS}, s{s_t0}")
    a(f"s_addc_u32 s{S_B+1}, s{S_WS+1}, 0")
    a(f"v_add_u32 v{v_t3}, 0x20000, v{v_qo}")
    def issue(c):
        buf = c % 3
        for ks in range(8):
            for mt in range(2):
                a(f"global_load_dwordx4 {vr(v_A + buf*64 + (ks*2+mt)*4, 4)}, v{v_qo if mt == 0 else v_t3}, s[{S_B}:{S_B+1}] offset:{(c*8+ks)*64}{OSC}")
    issue(0); issue(1); issue(2)
    for c in range(4):
        buf = c % 3
        a(f"s_waitcnt vmcnt({[32, 32, 16, 0][c]})")
        for ks in range(8):
            for mt in range(2):
                for nt in range(2):
                    acc = vr(v_acc + (mt*2+nt)*4, 4)
                    a(f"v_mfma_f32_16x16x32_bf16 {acc}, {ar(((c*8+ks)*2+nt)*4,4)}, {vr(v_A + buf*64 + (ks*2+mt)*4,4)}, {'0' if (c == 0 and ks == 0) else acc}")
        if c == 0:
            issue(3)
    a("s_nop 7")
    a("s_nop 1")
    for t in range(4):
        a(f"ds_write_b128 v{v_rw}, {vr(v_acc + 4*t,4)} offset:{t*1024}")
    a("s_waitcnt lgkmcnt(0)")
    a("s_barrier")
    a(f"v_add_u32 v{v_t}, 65536, v{v_rr}")
    for w in range(4):
        a(f"ds_read_b128 {vr(v_A + 4*w,4)}, v{v_rr if w < 2 else v_t} offset:{(w&1)*32768}")
    a("s_waitcnt lgkmcnt(0)")
    a("s_barrier")
    R = v_A
    for r in range(4):
        a(f"v_add_f32 v{R+r}, v{R+r}, v{R+4+r}")
        a(f"v_add_f32 v{R+8+r}, v{R+8+r}, v{R+12+r}")
    for r in range(4):
        a(f"v_add_f32 v{R+r}, v{R+r}, v{R+8+r}")
    a(f"v_sub_f32 v{v_t2}, 1.0, v{v_gg}")
    a(f"v_cvt_pk_bf16_f32 v{v_t2}, v{v_t2}, v{v_t2}")
    a(f"v_lshlrev_b32 v{v_t2}, 16, v{v_t2}")
    a(f"v_cvt_pk_bf16_f32 v{R+4}, v{R}, v{R+1}")
    a(f"v_cvt_pk_bf16_f32 v{R+5}, v{R+2}, v{R+3}")
    for h in range(2):
        a(f"v_lshlrev_b32 v{R+2*h}, 16, v{R+4+h}")
        a(f"v_and_b32 v{R+2*h+1}, 0xffff0000, v{R+4+h}")
        a(f"v_lshlrev_b32 v{R+8+2*h}, 16, v{v_bb+h}")
        a(f"v_and_b32 v{R+8+2*h+1}, 0xffff0000, v{v_bb+h}")
    for r in range(4):
        a(f"v_mul_f32 v{R+r}, v{R+r}, v{v_gg}")
        a(f"v_mul_f32 v{R+8+r}, v{R+8+r}, v{v_t2}")
    for h in range(2):
        a(f"v_cvt_pk_bf16_f32 v{R+4+h}, v{R+2*h}, v{R+2*h+1}")
        a(f"v_cvt_pk_bf16_f32 v{R+6+h}, v{R+8+2*h}, v{R+8+2*h+1}")
    for h in range(2):
        a(f"v_lshlrev_b32 v{R+2*h}, 16, v{R+4+h}")
        a(f"v_and_b32 v{R+2*h+1}, 0xffff0000, v{R+4+h}")
        a(f"v_lshlrev_b32 v{R+8+2*h}, 16, v{R+6+h}")
        a(f"v_and_b32 v{R+8+2*h+1}, 0xffff0000, v{R+6+h}")
    for r in range(4):
        a(f"v_add_f32 v{R+r}, v{R+r}, v{R+8+r}")
    a(f"v_cvt_pk_bf16_f32 v{R+4}, v{R}, v{R+1}")
    a(f"v_cvt_pk_bf16_f32 v{R+5}, v{R+2}, v{R+3}")
    a(f"s_add_u32 s{S_B}, s{S_OUT}, s{s_so}")
    a(f"s_addc_u32 s{S_B+1}, s{S_OUT+1}, 0")
    a(f"global_store_dwordx2 v{v_oo}, {vr(R+4,2)}, s[{S_B}:{S_B+1}]")
    if TL: wstamp2(a, s_s, 4)
    a(f"s_add_u32 s{s_s}, s{s_s}, 4")
    a(f"s_cmp_lt_u32 s{s_s}, 64")
    a(f"s_cbranch_scc1 {name}_wo")
    a.label(f"{name}_done")
    a("s_waitcnt vmcnt(0)")
```

```python
from gen_common import *
from m_sync import *
from m_rec import gen_rec_body
from m_gemm1 import gen_gemm1_body
from m_down import gen_down_body
from m_tail import gen_clear_body, gen_gate_body, gen_tail_body
import sys
out = sys.argv[1] if len(sys.argv) > 1 else "mega.s"
kw = dict(x.split("=") for x in sys.argv[2:])
kw = {k: int(v) for k, v in kw.items()}
a = Asm()
a.raw("; @launch kernel=mega_kernel grid=(256,1,1) block=(256,1,1) lds=131072")
a.raw('.amdgcn_target "amdgcn-amd-amdhsa--gfx950"')
a.raw(".text")
kernel_header(a, "mega_kernel")
a("s_cmp_ge_u32 s2, 256")
a("s_cbranch_scc1 mega_end")
a("s_cmp_ge_u32 s2, 128")
a("s_cbranch_scc1 mega_worker")
gen_rec_body(a, "rec", **{k: v for k, v in kw.items() if k != "ONC"})
a.label("mega_worker")
a(f"s_sub_u32 s{S_WID}, s2, 128")
TL = kw.get("TL", 0)
if TL: wstamp(a, "s0", 0)
if kw.get("FS", 0) & 1:
    a(f"s_load_dwordx2 s[{S_DBGW}:{S_DBGW+1}], s[0:1], 104")
else:
    gen_clear_body(a, "clr")
if TL: wstamp(a, "s1", 1)
gen_gemm1_body(a, "g1")
if TL: wstamp(a, "s2", 2)
a(f"s_cmp_ge_u32 s{S_WID}, 96")
a("s_cbranch_scc1 mega_tail")
a(f"s_cmp_ge_u32 s{S_WID}, 80")
a("s_cbranch_scc1 mega_gate")
gen_down_body(a, "dn")
a("s_branch mega_tail")
a.label("mega_gate")
gen_gate_body(a, "gt")
a.label("mega_tail")
if TL: wstamp(a, "s3", 3)
gen_tail_body(a, "tl", TL=TL, ONC=kw.get("ONC", 0))
a.label("mega_end")
a("s_endpgm")
a.raw('.section .rodata,"a"')
a.raw(".p2align 6")
a.raw(kernel_desc("mega_kernel", 512, 102, 256))
open(out, "w").write(a.text())
```
